```python
import torch

def _softmax(x, axis=-1):
    return torch.softmax(x, dim=axis)
def _gelu(x):
    return torch.nn.functional.gelu(x, approximate="tanh")
def _silu(x):
    return torch.nn.functional.silu(x)
def _sigmoid(x):
    return torch.sigmoid(x)
def _layernorm(x, axis=-1, eps=1e-5):
    m = x.mean(dim=axis, keepdim=True)
    v = x.var(dim=axis, keepdim=True, unbiased=False)
    return (x - m) / torch.sqrt(v + eps)
def _scatter_add(tgt, idx, src, axis=0):
    return tgt.clone().index_add_(axis, idx, src)
def _segment_sum(src, seg, n):
    out = torch.zeros((n,) + src.shape[1:], dtype=src.dtype)
    return out.index_add_(0, seg, src)
def _pad(x, pw):
    flat = tuple(v for pair in reversed(pw) for v in pair)
    return torch.nn.functional.pad(x, flat)

kernel_name = 'gated_mix__sliding_block_cached__geglu_ffn__decode'

def setup_inputs():

    _w = (lambda a: (lambda t: t.to(torch.bfloat16) if t.is_floating_point() else t)(torch.as_tensor(a)))
    def _A_setup():
        B, Sq, D = 1, 1, 640
        Hq, Hkv, Sk, Dh = 32, 32, 32768, 192
        assert Hq % Hkv == 0, (Hq, Hkv)
        return {
            "x": _w((lambda *s: torch.randn(*s, dtype=torch.bfloat16) * 0.05)(B, Sq, D)),
            "k_cache": _w((lambda *s: torch.randn(*s, dtype=torch.bfloat16) * 6.4)(B, Hkv, Sk, Dh)),
            "v_cache": _w((lambda *s: torch.randn(*s, dtype=torch.bfloat16) * 0.2)(B, Hkv, Sk, Dh)),
            "wq": _w((lambda *s: torch.randn(*s, dtype=torch.bfloat16) * 6.4)(D, Hq * Dh) * (D ** -0.5)),
            "wo": _w((lambda *s: torch.randn(*s, dtype=torch.bfloat16) * 0.2)(Hq * Dh, D) * ((Hq * Dh) ** -0.5)),
        }
    _A_in = _A_setup()

    def _B_setup():
        B, S, D, F = 1, 1, 640, 1536
        return {
            "x": _w((lambda *s: torch.randn(*s, dtype=torch.bfloat16) * 0.05)(B, S, D)),
            "w_gate": _w((lambda *s: torch.randn(*s, dtype=torch.bfloat16) * 0.05)(D, F)),
            "w_up": _w((lambda *s: torch.randn(*s, dtype=torch.bfloat16) * 0.05)(D, F)),
            "w_down": _w((lambda *s: torch.randn(*s, dtype=torch.bfloat16) * 0.05)(F, D)),
        }
    _B_in = _B_setup()

    return {
        "A_x": _A_in["x"],
        "A_k_cache": _A_in["k_cache"],
        "A_v_cache": _A_in["v_cache"],
        "A_wq": _A_in["wq"],
        "A_wo": _A_in["wo"],
        "B_x": _B_in["x"],
        "B_w_gate": _B_in["w_gate"],
        "B_w_up": _B_in["w_up"],
        "B_w_down": _B_in["w_down"],
        "gate_w": _w((lambda *s: torch.randn(*s, dtype=torch.bfloat16) * 0.1)(640) * 16.0),
    }

def reference(A_x, A_k_cache, A_v_cache, A_wq, A_wo, B_x, B_w_gate, B_w_up, B_w_down, gate_w):
    def _A_ref(x, k_cache, v_cache, wq, wo):
        B, Sq, D = x.shape
        Hq, Dh = 32, 192
        Hkv, Sk = k_cache.shape[1], k_cache.shape[2]
        W = min(4096, max(256, Sk // 4))
        rep = Hq // Hkv
        q = (lambda x, *d: x.permute(*d))((x @ wq).reshape(B, Sq, Hq, Dh), 0, 2, 1, 3)
        k = (lambda x, n, axis: torch.repeat_interleave(x, n, dim=axis))(k_cache[:, :, Sk - W:, :], rep, axis=1)
        v = (lambda x, n, axis: torch.repeat_interleave(x, n, dim=axis))(v_cache[:, :, Sk - W:, :], rep, axis=1)
        scores = torch.einsum("bhqd,bhkd->bhqk", q, k) * (Dh ** -0.5)
        p = _softmax(scores, axis=-1)
        o = torch.einsum("bhqk,bhkd->bhqd", p, v)
        return (lambda x, *d: x.permute(*d))(o, 0, 2, 1, 3).reshape(B, Sq, Hq * Dh) @ wo

    def _B_ref(x, w_gate, w_up, w_down):
        return (_gelu(x @ w_gate) * (x @ w_up)) @ w_down

    x = A_x
    g = _sigmoid((x * gate_w).sum(-1, keepdims=True))
    a = _A_ref(x, A_k_cache, A_v_cache, A_wq, A_wo)
    b = _B_ref(x, B_w_gate, B_w_up, B_w_down)
    return g * a + (1 - g) * b
```

```python
import re, sys

def regs(tok):
    tok = tok.strip()
    neg = tok.startswith('-')
    if neg: tok = tok[1:]
    m = re.fullmatch(r'\|?([vsa])(\d+)\|?', tok)
    if m: return {(m.group(1), int(m.group(2)))}
    m = re.fullmatch(r'([vsa])\[(\d+):(\d+)\]', tok)
    if m: return {(m.group(1), i) for i in range(int(m.group(2)), int(m.group(3)) + 1)}
    if tok == 'vcc': return {('s', 'vcc')}
    if tok == 'exec': return {('s', 'exec')}
    return set()

TRANS = ('v_exp_f32', 'v_log_f32', 'v_rcp_f32', 'v_rsq_f32', 'v_sqrt_f32', 'v_sin_f32', 'v_cos_f32')

class I:
    def __init__(s, line, n):
        s.line = line; s.n = n
        body = line.split(';')[0].strip()
        p = body.split(None, 1)
        s.op = p[0]
        rest = p[1] if len(p) > 1 else ''
        ops = [o.strip() for o in rest.split(',')]
        if ops:
            last = ops[-1].split()
            s.mods = ' '.join(last[1:]) if last else ''
            ops[-1] = last[0] if last else ''
        s.ops = ops
        op = s.op
        s.valu = op.startswith('v_') and not op.startswith('v_mfma')
        s.mfma = op.startswith('v_mfma')
        s.dpp = '_dpp' in op or 'quad_perm' in body or 'row_' in body
        s.perml = op.startswith('v_permlane')
        s.trans = op.replace('_e32', '').replace('_e64', '') in TRANS
        s.dot = op.startswith('v_dot')
        s.vmem = op.startswith(('global_', 'buffer_', 'flat_'))
        s.ds = op.startswith('ds_')
        s.salu = op.startswith('s_')
        s.w = set(); s.r = set(); s.srcc = set()
        R = [regs(o) for o in ops]
        if s.mfma:
            s.w = R[0]; s.r = R[1] | R[2] | R[3]; s.srcc = R[3]
        elif s.perml:
            s.w = R[0] | R[1]; s.r = R[0] | R[1]
        elif op.startswith('v_cmp'):
            s.w = R[0]; s.r = set().union(*R[1:])
        elif op.startswith(('v_readlane', 'v_readfirstlane')):
            s.w = R[0]; s.r = set().union(*R[1:])
        elif s.valu:
            s.w = R[0]; s.r = set().union(*R[1:]) if len(R) > 1 else set()
            if op.startswith(('v_fmac', 'v_dot2c', 'v_pk_fmac')) or s.dpp: s.r |= R[0]
            if '_co_' in op: s.w |= R[1]
            if op.startswith('v_cndmask') and len(R) == 3: s.r |= {('s', 'vcc')}
        elif s.vmem:
            if 'store' in op or ('atomic' in op and 'sc0' not in s.mods):
                s.r = set().union(*R)
            else:
                s.w = R[0]; s.r = set().union(*R[1:])
        elif s.ds:
            if op.startswith(('ds_write', 'ds_add')): s.r = set().union(*R)
            else: s.w = R[0]; s.r = set().union(*R[1:])
        elif s.salu:
            if op.startswith(('s_cmp', 's_cbranch', 's_branch', 's_waitcnt', 's_nop', 's_barrier', 's_sleep', 's_endpgm', 's_setprio', 's_bitcmp')):
                s.r = set().union(*R) if R else set()
            else:
                s.w = R[0]; s.r = set().union(*R[1:]) if len(R) > 1 else set()
        s.states = 1
        if op == 's_nop': s.states = int(ops[0], 0) + 1

def check(text):
    ins = []
    for n, line in enumerate(text.splitlines(), 1):
        t = line.split(';')[0].strip()
        if not t or t.startswith('.') or t.endswith(':'): continue
        ins.append(I(line, n))
    probs = []
    for k, c in enumerate(ins):
        dist = 0
        for p in reversed(ins[max(0, k - 24):k]):
            need = 0; why = ''
            vw = {x for x in p.w if x[0] in 'va'}
            sw = {x for x in p.w if x[0] == 's'}
            def up(n, w):
                nonlocal need, why
                if n > need: need, why = n, w
            if p.valu and vw & c.r:
                if c.dpp: up(2, 'valu->dpp')
                if c.perml: up(2, 'valu->permlane')
                if c.mfma: up(2, 'valu->mfma')
                if c.op.startswith(('v_readlane', 'v_readfirstlane')): up(1, 'valu->readlane')
                if p.trans and c.valu and not c.trans: up(1, 'trans->valu')
                if p.trans and (c.vmem or c.ds): up(1, 'trans->mem')
            if p.dot and (vw & (c.r | c.w)) and c.op != p.op and not c.salu: up(3, 'dot->other')
            if p.dot and c.op == p.op and (vw & (regs(c.ops[1]) | regs(c.ops[2]))): up(3, 'dot->dot srcAB')
            if p.mfma:
                passes = 8 if '32x32x16' in p.op else 4
                if 'f32_16x16x4_f32' in p.op: passes = 8
                if c.mfma:
                    if vw & (regs(c.ops[1]) | regs(c.ops[2])): up(passes + 4, 'mfma->mfma AB')
                    elif vw & c.srcc and vw != c.srcc: up(passes + 2, 'mfma->mfma C partial')
                elif vw & (c.r | c.w): up(passes + 4, 'mfma->valu/mem')
                if c.valu and (p.srcc & c.w): up(passes - 1, 'mfma srcC WAR')
            if p.valu and sw:
                if c.valu and (sw & c.r):
                    up(2, 'valu sgpr->valu const')
                    if c.op.startswith(('v_readlane', 'v_writelane')) and sw & regs(c.ops[2]): up(4, 'lane select')
                if c.vmem and (sw & c.r): up(5, 'valu sgpr->vmem')
            if p.vmem and 'store' in p.op and ('x3' in p.op or 'x4' in p.op):
                if (p.r & c.w): up(2 if c.valu else 1, 'store data WAR')
            if need > dist:
                probs.append(f"line {c.n}: '{c.line.strip()}' needs {need} ({why}) after line {p.n} '{p.line.strip()}', has {dist}")
            dist += p.states
            if p.op in ('s_branch', 's_endpgm'): break
    return probs

if __name__ == '__main__':
    pr = check(open(sys.argv[1]).read())
    for x in pr: print(x)
    print(len(pr), 'hazard findings')
```

```python
import sys, struct
KN = "gated_mix__sliding_block_cached__geglu_ffn__decode_kernel"

QP_OFF = 4096
HDR_OFF = QP_OFF + 32 * 10240
OP_OFF = HDR_OFF + 32 * 1024
FP_OFF = OP_OFF + 32 * 6144
STAMP_OFF = 1 << 22

LDS_Q = 0
LDS_G = 384
LDS_HID = 400
LDS_O = 512
OSTR = 3072 + 16
LDS_BYTES = LDS_O + 8 * OSTR

def f2u(f): return struct.unpack("<I", struct.pack("<f", f))[0]
LOG2E = 1.4426950408889634

HEADER = open("gated_mix__sliding_block_cached__geglu_ffn__decode.s.ref").read().split("; Override")[0]

class G:
    def __init__(s, diag=False):
        s.L = []; s.vm = []; s.diag = diag
    def A(s, x): s.L.append("    " + x)
    def lab(s, x): s.L.append(x + ":")
    def c(s, x): s.L.append("    ; " + x)
    def vmem(s, x, tag=None):
        s.A(x); s.vm.append(tag)
    def wait(s, tag):
        idx = max(i for i, t in enumerate(s.vm) if t == tag)
        n = len(s.vm) - 1 - idx
        s.A(f"s_waitcnt vmcnt({n})")
    def stamp(s, i):
        if s.diag: s.A(f"s_memrealtime s[{64+2*i}:{65+2*i}]")

KB = 64; VB = 160
def kreg(i): return f"v[{KB+4*i}:{KB+4*i+3}]"
def vreg(i): return f"v[{VB+4*i}:{VB+4*i+3}]"
DPP = "row_mask:0xf bank_mask:0xf"

def gen(D=6, X=3, diag=False, hdr_at=17, spin=200000, prefetch_code=True):
    g = G(diag); A = g.A
    L = g.L
    L.append(HEADER.rstrip())
    L.append(f"; @launch grid=(256,1,1) block=(512,1,1) lds={LDS_BYTES}")
    L.append('.amdgcn_target "amdgcn-amd-amdhsa--gfx950"')
    L.append(".text"); L.append(f".globl {KN}"); L.append(".p2align 8"); L.append(f".type {KN},@function")
    g.lab(KN)
    A("s_cmp_ge_u32 s2, 256"); A("s_cbranch_scc1 L_end")
    A("s_load_dwordx16 s[4:19], s[0:1], 0")
    A("s_load_dwordx8 s[20:27], s[0:1], 64")
    A("s_load_dwordx2 s[28:29], s[0:1], 96")
    g.stamp(0)
    A("v_lshrrev_b32 v52, 6, v0")
    A("v_and_b32 v1, 63, v0")
    A("v_readfirstlane_b32 s32, v52")
    A("v_lshrrev_b32 v2, 3, v1")
    A("v_and_b32 v3, 7, v1")
    A("v_mov_b32 v60, 0")
    A("s_and_b32 s30, s2, 31")
    A("s_lshr_b32 s31, s2, 5")
    A("v_mul_u32_u24 v9, 384, v2")
    A("v_lshl_add_u32 v9, v3, 4, v9")
    A("v_mul_u32_u24 v52, 24576, v52")
    A("v_add3_u32 v9, v9, v52, 0")
    A("v_add_u32 v9, 3072, v9")
    A("v_add_u32 v10, 9216, v9")
    A("v_add_u32 v11, 18432, v9")
    A("s_mul_i32 s35, s30, 12582912")
    A("s_mul_i32 s36, s31, 196608")
    A("s_add_u32 s35, s35, s36")
    A(f"s_add_u32 s35, s35, {28672*384}")
    A("s_and_b32 s39, s30, 7"); A("s_lshl_b32 s39, s39, 2"); A("s_lshr_b32 s36, s30, 3"); A("s_add_u32 s39, s39, s36")
    A("s_cmp_lt_u32 s32, 5")
    A("s_waitcnt lgkmcnt(0)")
    A("s_load_dword s33, s[28:29], 0")
    A("s_cbranch_scc0 L_proB")

    def kv_load(kind, idx):
        gg, s = divmod(idx, 3)
        base = 9 + gg // 3
        imm = (gg % 3 - 1) * 3072 + s * 128
        if kind == "K": g.vmem(f"global_load_dwordx4 {kreg(idx)}, v{base}, s[6:7] offset:{imm} nt", ("K", idx))
        else: g.vmem(f"global_load_dwordx4 {vreg(idx)}, v{base}, s[8:9] offset:{imm} nt", ("V", idx))

    def consts():
        A("v_and_b32 v52, 1, v1")
        A("v_mov_b32 v53, 0xffff")
        A("v_lshlrev_b32 v52, 4, v52")
        A("v_lshlrev_b32 v53, v52, v53")
        A("v_lshrrev_b32 v52, 1, v3")
        for r in range(4):
            A(f"v_cmp_eq_u32 vcc, {r}, v52")
            A("s_nop 1")
            A(f"v_cndmask_b32 v{4+r}, 0, v53, vcc")
        A("v_mov_b32 v8, 0xff")
        A(f"s_mov_b32 s49, {f2u(192 ** -0.5):#x}")
        A(f"s_mov_b32 s50, {f2u(LOG2E):#x}")

    g.c("waves 0-4: partial projections of x rows [80c, 80c+80)")
    A("s_mul_i32 s36, s30, 384"); A("s_lshl_b32 s37, s32, 7"); A("s_add_u32 s36, s36, s37")
    A("s_mul_i32 s37, s39, 96")
    A("s_cmp_eq_u32 s32, 3")
    A("s_cselect_b32 s40, s16, s18"); A("s_cselect_b32 s41, s17, s19")
    A("s_cmp_lt_u32 s32, 3")
    A("s_cselect_b32 s40, s10, s40"); A("s_cselect_b32 s41, s11, s41")
    A("s_cselect_b32 s36, s36, s37")
    A("s_movk_i32 s38, 3072")
    A("s_cselect_b32 s38, 12288, s38")
    A("s_cselect_b32 s37, 7, 5")
    A("s_add_u32 s40, s40, s36"); A("s_addc_u32 s41, s41, 0")
    A("s_mul_i32 s36, s31, 80")
    A("v_mul_u32_u24 v52, 10, v2")
    A("v_add_u32 v52, s36, v52")
    A("v_lshlrev_b32 v53, 1, v52")
    g.vmem("global_load_dwordx4 v[20:23], v53, s[4:5]", "x0")
    g.vmem("global_load_dword v24, v53, s[4:5] offset:16", "x1")
    A("v_mul_u32_u24 v52, s38, v52")
    A("v_min_u32 v53, s37, v3")
    A("v_lshl_add_u32 v52, v53, 4, v52")
    for t in range(10):
        g.vmem(f"global_load_dwordx4 {vreg(t)}, v52, s[40:41] nt", ("P", t))
        if t < 9: A("v_add_u32 v52, s38, v52")
    A("s_add_u32 s6, s6, s35"); A("s_addc_u32 s7, s7, 0")
    A("s_add_u32 s8, s8, s35"); A("s_addc_u32 s9, s9, 0")
    consts()
    A("s_mov_b32 s47, 0x01000100"); A("s_mov_b32 s48, 0x03020302")
    for r in range(4): A(f"v_mov_b32 v{40+r}, 0")
    for t in range(10):
        g.wait(("P", t))
        kv_load("K", t)
        a = 12 + 4 * (t & 1)
        A(f"v_perm_b32 v52, v{20 + t//2}, v{20 + t//2}, s{47 + (t & 1)}")
        for r in range(4): A(f"v_and_b32 v{a+r}, v52, v{4+r}")
        A("s_nop 1")
        A(f"v_mfma_f32_16x16x32_bf16 v[40:43], v[{a}:{a+3}], {vreg(t)}, v[40:43]")
    A("s_mul_i32 s36, s30, 10240"); A("s_lshl_b32 s37, s32, 11"); A("s_add_u32 s36, s36, s37")
    A("s_lshl_b32 s37, s31, 8"); A("s_add_u32 s36, s36, s37"); A(f"s_add_u32 s36, s36, {QP_OFF}")
    A("v_lshlrev_b32 v52, 5, v3")
    A("v_bfe_u32 v53, v1, 4, 1")
    A("v_lshl_add_u32 v52, v53, 4, v52")
    A("v_lshrrev_b32 v53, 5, v1")
    A("v_lshl_add_u32 v52, v53, 3, v52")
    A("v_add_u32 v52, s36, v52")
    A("s_waitcnt lgkmcnt(0)")
    A("s_add_u32 s33, s33, 1"); A("s_and_b32 s34, s33, 0xff")
    A("v_permlane32_swap_b32 v40, v42")
    A("v_permlane32_swap_b32 v41, v43")
    A("s_nop 1")
    A(f"v_add_f32_dpp v40, v42, v40 row_ror:8 {DPP}")
    A(f"v_add_f32_dpp v41, v43, v41 row_ror:8 {DPP}")
    A("v_bfi_b32 v40, v8, s34, v40")
    A("v_bfi_b32 v41, v8, s34, v41")
    A("s_mov_b32 exec_lo, 0x00ff00ff"); A("s_mov_b32 exec_hi, 0x00ff00ff")
    A("global_store_dwordx2 v52, v[40:41], s[28:29] sc1")
    A("s_mov_b64 exec, -1")
    g.stamp(1)
    A("s_branch L_join1")

    g.lab("L_proB")
    g.vm = []
    A("s_add_u32 s6, s6, s35"); A("s_addc_u32 s7, s7, 0")
    A("s_add_u32 s8, s8, s35"); A("s_addc_u32 s9, s9, 0")
    for t in range(min(D, 10)): kv_load("K", t)
    A("v_mul_u32_u24 v53, 20, v1")
    g.vmem("global_load_dwordx4 v[20:23], v53, s[4:5]")
    g.vmem("global_load_dword v24, v53, s[4:5] offset:16")
    g.vmem("global_load_dwordx4 v[26:29], v53, s[22:23]")
    g.vmem("global_load_dword v30, v53, s[22:23] offset:16")
    if prefetch_code:
        A("s_getpc_b64 s[36:37]")
        g.lab("L_pc")
        A(f"s_sub_u32 s36, s36, L_pc-{KN}"); A("s_subb_u32 s37, s37, 0")
        A("v_lshlrev_b32 v53, 7, v1")
        A(f"v_min_u32 v53, L_end-{KN}, v53")
        g.vmem("global_load_dword v31, v53, s[36:37]")
    consts()
    for t in range(min(D, 10), 10):
        g.wait(("K", t - D)); kv_load("K", t)
    A("s_waitcnt lgkmcnt(0)")
    A("s_add_u32 s33, s33, 1"); A("s_and_b32 s34, s33, 0xff")
    g.stamp(1)

    g.lab("L_join1")
    g.vm = [("K", i) for i in range(10)]
    for t in range(10, 24):
        g.wait(("K", t - D)); kv_load("K", t)
    g.stamp(2)
    GR = VB + 64
    A("s_mul_i32 s36, s30, 10240"); A(f"s_add_u32 s36, s36, {QP_OFF}")
    A("s_add_u32 s40, s28, s36"); A("s_addc_u32 s41, s29, 0")
    A("s_cmp_lt_u32 s32, 6"); A("s_cbranch_scc1 L_nogather")
    A("s_cmp_eq_u32 s32, 6"); A("s_cbranch_scc1 L_gatherH")
    A("v_min_u32 v52, 47, v1")
    A("v_lshrrev_b32 v53, 4, v52")
    A("v_and_b32 v52, 15, v52")
    A("v_lshlrev_b32 v52, 4, v52")
    A("v_lshl_add_u32 v60, v53, 11, v52")
    def qgather():
        for p in range(8): A(f"global_load_dwordx4 v[{GR+4*p}:{GR+4*p+3}], v60, s[40:41] offset:{p*256} sc1")
    qgather()
    A("s_branch L_nogather")
    g.lab("L_gatherH")
    A("v_min_u32 v52, 5, v2")
    A("s_mul_i32 s36, s31, 6")
    A("v_add_u32 v52, s36, v52")
    A("v_lshlrev_b32 v52, 2, v52")
    A("v_lshl_add_u32 v60, v3, 8, v52")
    A("v_add_u32 v60, 6144, v60")
    def hgather():
        A(f"global_load_dword v{GR}, v60, s[40:41] sc1")
        A(f"global_load_dword v{GR+1}, v60, s[40:41] offset:2048 sc1")
    hgather()
    g.lab("L_nogather")
    for t in range(D):
        g.wait(("K", 24 + t - D)); kv_load("V", t)
    g.stamp(3)
    A("s_cmp_lt_u32 s32, 5"); A("s_cbranch_scc1 L_B1")
    A(f"s_mov_b32 s46, {spin}")
    A("s_cmp_eq_u32 s32, 6"); A("s_cbranch_scc1 L_jobH")
    A("s_cmp_eq_u32 s32, 5"); A("s_cbranch_scc1 L_jobG")

    def retry(name, reload_fn, masked=False):
        A("s_cmp_eq_u64 vcc, 0")
        A(f"s_cbranch_scc1 L_{name}_ok")
        A("s_sub_u32 s46, s46, 1"); A("s_cbranch_scc1 L_%s_ok" % name)
        if masked: A("s_mov_b64 exec, vcc")
        reload_fn()
        A("s_waitcnt vmcnt(0)")
        A(f"s_branch L_{name}_chk")
        g.lab(f"L_{name}_ok")
        if masked: A("s_mov_b64 exec, -1")

    def tagcheck(rlist, tmp, pair=False):
        for r in rlist: A(f"v_xor_b32 v{r}, s34, v{r}")
        rl = list(rlist)
        if len(rl) == 1: A(f"v_mov_b32 v{tmp}, v{rl[0]}"); rl = []
        elif len(rl) == 2: A(f"v_or_b32 v{tmp}, v{rl[0]}, v{rl[1]}"); rl = []
        else: A(f"v_or3_b32 v{tmp}, v{rl[0]}, v{rl[1]}, v{rl[2]}"); rl = rl[3:]
        while len(rl) >= 2:
            A(f"v_or3_b32 v{tmp}, v{tmp}, v{rl[0]}, v{rl[1]}"); rl = rl[2:]
        if rl: A(f"v_or_b32 v{tmp}, v{tmp}, v{rl[0]}")
        if pair:
            A("s_nop 1")
            A(f"v_or_b32_dpp v{tmp}, v{tmp}, v{tmp} quad_perm:[1,0,3,2] {DPP}")
        A(f"v_and_b32 v{tmp}, v8, v{tmp}")
        A(f"v_cmp_ne_u32 vcc, 0, v{tmp}")

    g.lab("L_q_chk")
    tagcheck(range(GR, GR + 32), 52)
    retry("q", qgather)
    for st in (16, 8, 4):
        for r in range(st): A(f"v_add_f32 v{GR+r}, v{GR+r}, v{GR+st+r}")
    A(f"v_cvt_pk_bf16_f32 v52, v{GR}, v{GR+1}")
    A(f"v_cvt_pk_bf16_f32 v53, v{GR+2}, v{GR+3}")
    A("v_min_u32 v54, 47, v1")
    A("v_lshlrev_b32 v54, 3, v54")
    A(f"ds_write_b64 v54, v[52:53] offset:{LDS_Q}")
    A("s_branch L_B1")

    def red8(regs):
        for mode in ("quad_perm:[1,0,3,2]", "quad_perm:[2,3,0,1]", "row_half_mirror"):
            if len(regs) < 3: A(f"s_nop {2 - len(regs)}")
            for r in regs: A(f"v_add_f32_dpp v{r}, v{r}, v{r} {mode} {DPP}")

    def bf16r(dst, src):
        A(f"v_cvt_pk_bf16_f32 v{dst}, v{src}, v{src}")
        A(f"v_and_b32 v{dst}, 0xffff0000, v{dst}")

    g.lab("L_jobH")
    g.lab("L_h_chk")
    tagcheck([GR, GR + 1], 52)
    retry("h", hgather)
    A("s_nop 1")
    red8([GR, GR + 1])
    bf16r(52, GR); bf16r(53, GR + 1)
    A("v_mul_f32 v54, v52, v52")
    A(f"v_mov_b32 v55, {f2u(0.044715):#x}")
    A("v_fma_f32 v54, v54, v55, 1.0")
    A("v_mul_f32 v54, v54, v52")
    A(f"v_mul_f32 v54, {f2u(-2 * 0.7978845608028654 * LOG2E):#x}, v54")
    A("v_exp_f32 v54, v54")
    A("s_nop 0")
    A("v_add_f32 v54, 1.0, v54")
    A("v_rcp_f32 v54, v54")
    A("s_nop 0")
    A("v_mul_f32 v54, v54, v52")
    bf16r(54, 54)
    A("v_mul_f32 v54, v54, v53")
    A("v_cvt_pk_bf16_f32 v54, v54, v54")
    A("v_cmp_gt_u32 vcc, 6, v2")
    A("v_lshlrev_b32 v55, 2, v2")
    A("s_nop 0")
    A("v_cndmask_b32 v54, 0, v54, vcc")
    A(f"ds_write_b32 v55, v54 offset:{LDS_HID}")
    A("s_branch L_B1")

    def red64(r, op):
        for mode in ("quad_perm:[1,0,3,2]", "quad_perm:[2,3,0,1]", "row_half_mirror", "row_mirror"):
            A("s_nop 1"); A(f"{op}_dpp v{r}, v{r}, v{r} {mode} {DPP}")
        A("s_nop 1"); A(f"{op}_dpp v{r}, v{r}, v{r} row_bcast:15 row_mask:0xa bank_mask:0xf")
        A("s_nop 1"); A(f"{op}_dpp v{r}, v{r}, v{r} row_bcast:31 row_mask:0xc bank_mask:0xf")

    g.lab("L_jobG")
    A("v_mov_b32 v56, 0")
    for i in range(5):
        xr = 20 + i; wr = 26 + i
        A(f"v_lshlrev_b32 v52, 16, v{xr}"); A(f"v_and_b32 v53, 0xffff0000, v{xr}")
        A(f"v_lshlrev_b32 v54, 16, v{wr}"); A(f"v_and_b32 v55, 0xffff0000, v{wr}")
        A("v_mul_f32 v52, v52, v54"); A("v_mul_f32 v53, v53, v55")
        A("v_cvt_pk_bf16_f32 v52, v52, v53")
        A("v_lshlrev_b32 v53, 16, v52"); A("v_and_b32 v52, 0xffff0000, v52")
        A("v_add_f32 v56, v56, v53"); A("v_add_f32 v56, v56, v52")
    red64(56, "v_add_f32")
    A("s_nop 0")
    A("v_readlane_b32 s36, v56, 63")
    A("s_nop 1")
    A("v_mov_b32 v56, s36")
    bf16r(56, 56)
    A(f"v_mul_f32 v56, {f2u(-LOG2E):#x}, v56")
    A("v_exp_f32 v56, v56")
    A("s_nop 0")
    A("v_add_f32 v56, 1.0, v56")
    A("v_rcp_f32 v56, v56")
    A("s_nop 0")
    bf16r(56, 56)
    A("v_sub_f32 v57, 1.0, v56")
    bf16r(57, 57)
    A("v_mov_b32 v52, 0")
    A(f"ds_write_b64 v52, v[56:57] offset:{LDS_G}")

    g.lab("L_B1")
    A("s_waitcnt lgkmcnt(0)")
    A("s_barrier")
    g.stamp(4)
    A("v_lshlrev_b32 v52, 4, v3")
    for s in range(3): A(f"ds_read_b128 v[{20+4*s}:{23+4*s}], v52 offset:{LDS_Q + 128*s}")
    A("v_lshlrev_b32 v53, 2, v2")
    A(f"ds_read_b32 v61, v53 offset:{LDS_HID}")
    A("v_mov_b32 v53, 0")
    A(f"ds_read_b64 v[62:63], v53 offset:{LDS_G}")
    for gg in range(8): A(f"v_mov_b32 v{32+gg}, 0")
    for r in range(12): A(f"v_mov_b32 v{40+r}, 0")
    nextV = D
    A("s_waitcnt lgkmcnt(0)")
    xs = [12 * (i + 1) // (X + 1) for i in range(X)] if X else []
    for sr in range(12):
        s, r = divmod(sr, 4)
        for _ in range(xs.count(sr)):
            kv_load("V", nextV); nextV += 1
        for gg in range(8):
            A(f"v_dot2c_f32_bf16 v{32+gg}, v{KB + (3*gg+s)*4 + r}, v{20+4*s+r}")
    red8(list(range(32, 40)))
    for p in range(4): A(f"v_cvt_pk_bf16_f32 v{52+p}, v{32+2*p}, v{33+2*p}")
    for p in range(4):
        A(f"v_lshlrev_b32 v{32+2*p}, 16, v{52+p}"); A(f"v_and_b32 v{33+2*p}, 0xffff0000, v{52+p}")
    for gg in range(8): A(f"v_mul_f32 v{32+gg}, s49, v{32+gg}")
    for p in range(4): A(f"v_cvt_pk_bf16_f32 v{52+p}, v{32+2*p}, v{33+2*p}")
    for p in range(4):
        A(f"v_lshlrev_b32 v{32+2*p}, 16, v{52+p}"); A(f"v_and_b32 v{33+2*p}, 0xffff0000, v{52+p}")
    A("v_max3_f32 v52, v32, v33, v34"); A("v_max3_f32 v53, v35, v36, v37")
    A("v_max3_f32 v52, v52, v38, v39"); A("v_max_f32 v52, v52, v53")
    def red8groups(r, op):
        A("s_nop 1"); A(f"{op}_dpp v{r}, v{r}, v{r} row_ror:8 {DPP}")
        A("s_nop 1"); A(f"{op}_dpp v{r}, v{r}, v{r} row_bcast:15 row_mask:0xa bank_mask:0xf")
        A("s_nop 1"); A(f"{op}_dpp v{r}, v{r}, v{r} row_bcast:31 row_mask:0xc bank_mask:0xf")
    red8groups(52, "v_max_f32")
    A("v_mul_f32 v52, s50, v52")
    A("s_nop 0")
    A("v_readlane_b32 s36, v52, 63")
    A("s_nop 1")
    A("v_mov_b32 v56, s36")
    for gg in range(8): A(f"v_fma_f32 v{32+gg}, v{32+gg}, s50, -v56")
    for gg in range(8): A(f"v_exp_f32 v{32+gg}, v{32+gg}")
    A("v_add_f32 v52, v32, v33"); A("v_add_f32 v53, v34, v35"); A("v_add_f32 v54, v36, v37")
    A("v_add_f32 v57, v38, v39")
    A("v_add_f32 v52, v52, v53"); A("v_add_f32 v57, v57, v54"); A("v_add_f32 v57, v57, v52")
    for gg in range(8): A(f"v_cvt_pk_bf16_f32 v{32+gg}, v{32+gg}, v{32+gg}")
    red8groups(57, "v_add_f32")
    A("v_mov_b32 v58, s33"); A("v_mov_b32 v59, s33")
    A("s_lshl_b32 s36, s30, 10"); A(f"s_add_u32 s36, s36, {HDR_OFF}")
    A("s_add_u32 s42, s28, s36"); A("s_addc_u32 s43, s29, 0")
    A("s_lshl_b32 s36, s31, 3"); A("s_add_u32 s36, s36, s32"); A("s_lshl_b32 s36, s36, 4")
    A("v_mov_b32 v52, s36")
    A("s_mov_b32 exec_lo, 0"); A("s_mov_b32 exec_hi, 0x80000000")
    g.vmem("global_store_dwordx4 v52, v[56:59], s[42:43] sc1", "hdrst")
    A("s_mov_b64 exec, -1")
    g.stamp(5)
    A("s_mul_i32 s36, s30, 192"); A("s_mul_i32 s37, s31, 24"); A("s_add_u32 s36, s36, s37"); A("s_mul_i32 s36, s36, 1280")
    A("s_add_u32 s12, s12, s36"); A("s_addc_u32 s13, s13, 0")
    A("s_mul_i32 s36, s39, 48"); A("s_mul_i32 s37, s31, 6"); A("s_add_u32 s36, s36, s37"); A("s_mul_i32 s36, s36, 1280")
    A("s_add_u32 s20, s20, s36"); A("s_addc_u32 s21, s21, 0")
    A("s_lshl_b32 s36, s32, 8")
    A("v_lshl_add_u32 v53, v3, 4, s36")
    A("v_mul_u32_u24 v20, 3840, v2")
    A("v_add_u32 v20, v20, v53")
    A("v_min_u32 v54, 5, v2")
    A("v_mul_u32_u24 v21, 1280, v54")
    A("v_add_u32 v21, v21, v53")
    A("v_lshlrev_b32 v22, 4, v1")
    A(f"s_mul_i32 s36, s32, {OSTR}")
    A("v_add_u32 v23, s36, v22")
    A("s_mul_i32 s36, s32, 6")
    A("v_add_u32 v54, s36, v54")
    A("v_lshrrev_b32 v55, 4, v54"); A("v_lshlrev_b32 v24, 10, v55")
    A("v_bfe_u32 v55, v54, 1, 3"); A("v_lshl_add_u32 v24, v55, 4, v24")
    A("v_and_b32 v55, 1, v54"); A("v_lshl_add_u32 v24, v55, 8, v24")
    A(f"v_mul_u32_u24 v55, {OSTR}, v3")
    A("v_add_u32 v24, v24, v55")
    A("s_mul_i32 s36, s30, 6144"); A(f"s_add_u32 s36, s36, {OP_OFF}")
    A("s_add_u32 s40, s28, s36"); A("s_addc_u32 s41, s29, 0")
    A("s_mul_i32 s36, s32, 768"); A("s_mul_i32 s37, s31, 96"); A("s_add_u32 s36, s36, s37")
    A("v_lshl_add_u32 v25, v2, 4, s36")
    A("s_mul_i32 s36, s31, 768")
    A("v_mul_u32_u24 v26, 96, v3")
    A("v_mul_u32_u24 v55, 12, v2")
    A("v_add3_u32 v26, v26, v55, s36")
    A("s_lshl_b32 s36, s31, 3")
    A("v_add_u32 v27, s36, v3")
    A("v_lshlrev_b32 v27, 2, v27")
    A(f"s_mov_b32 s46, {spin}")

    HG = 28
    def hdrgather(): A(f"global_load_dwordx4 v[{HG}:{HG+3}], v22, s[42:43] sc1")
    wl = [("D", 0), ("D", 1)] + [(t, u) for t in range(3) for u in range(2)]
    def w_load(i):
        t, u = wl[i]
        if t == "D": g.vmem(f"global_load_dwordx4 {kreg(i)}, v21, s[20:21] offset:{u*128} nt", ("W", i))
        else: g.vmem(f"global_load_dwordx4 {kreg(i)}, v20, s[12:13] offset:{t*1280+u*128} nt", ("W", i))

    def hdr_process(cls):
        g.wait("hdr")
        g.lab(f"L_hd{cls}_chk")
        A(f"v_xor_b32 v52, s33, v{HG+2}"); A(f"v_xor_b32 v53, s33, v{HG+3}")
        A("v_or_b32 v52, v52, v53")
        A("v_cmp_ne_u32 vcc, 0, v52")
        retry(f"hd{cls}", hdrgather)
        A(f"v_mov_b32 v52, v{HG}")
        red64(52, "v_max_f32")
        A("s_nop 0")
        A("v_readlane_b32 s36, v52, 63")
        A("s_nop 1")
        A(f"v_subrev_f32 v52, s36, v{HG}")
        A("v_exp_f32 v52, v52")
        A("s_nop 0")
        A(f"v_mul_f32 v53, v52, v{HG+1}")
        red64(53, "v_add_f32")
        A("v_rcp_f32 v53, v53")
        A("s_nop 0")
        A("v_readlane_b32 s36, v53, 63")
        A("s_nop 1")
        A("v_mul_f32 v52, s36, v52")
        A(f"ds_bpermute_b32 v{HG}, v27, v52")

    state = dict(nextV=nextV, nextW=0, hdr_issued=False, hdr_done=False)
    def pv_step(idx, cls, st):
        gg, s = divmod(idx, 3)
        a = 12 + 4 * (gg & 1)
        if s == 0:
            for r in range(4): A(f"v_and_b32 v{a+r}, v{32+gg}, v{4+r}")
        g.wait(("V", idx))
        issued = False
        if st["nextV"] < 24:
            if st["nextV"] >= hdr_at and not st["hdr_issued"]:
                hdrgather(); g.vm.append("hdr"); st["hdr_issued"] = True
            kv_load("V", st["nextV"]); st["nextV"] += 1; issued = True
        elif cls == "A" and st["nextW"] < 8:
            w_load(st["nextW"]); st["nextW"] += 1; issued = True
        if s == 0 and not issued: A("s_nop 0")
        A(f"v_mfma_f32_16x16x32_bf16 v[{40+4*s}:{43+4*s}], v[{a}:{a+3}], {vreg(idx)}, v[{40+4*s}:{43+4*s}]")

    idx = 0
    while state["nextV"] < 24:
        pv_step(idx, "C", state); idx += 1
    g.stamp(6)
    A("s_cmp_lt_u32 s32, 5"); A("s_cbranch_scc0 L_tailB")
    vm_save = list(g.vm)

    def oreduce():
        A("s_nop 7")
        for s in range(3): A(f"ds_write_b128 v23, v[{40+4*s}:{43+4*s}] offset:{LDS_O + 1024*s}")
        A("s_waitcnt lgkmcnt(0)")
        A("s_barrier")
        A(f"ds_read_b128 v[40:43], v24 offset:{LDS_O}")
        A(f"ds_read_b128 v[44:47], v24 offset:{LDS_O + 640}")
        A("s_waitcnt lgkmcnt(0)")
        for r in range(4): A(f"v_add_f32 v{40+r}, v{40+r}, v{44+r}")
        for r in range(4): A(f"v_mul_f32 v{40+r}, v{40+r}, v{HG}")
        red8([40, 41, 42, 43])
        for r in range(4): A(f"v_bfi_b32 v{40+r}, v8, s34, v{40+r}")
        A("s_mov_b32 exec_lo, 0x01010101"); A("s_mov_b32 exec_hi, 0x00000101")
        g.vmem("global_store_dwordx4 v25, v[40:43], s[40:41] sc1", "opst")
        A("s_mov_b64 exec, -1")

    def pv_rest(cls):
        st = dict(state)
        hdr_pos = hdr_at
        for i in range(idx, 24):
            if not st["hdr_done"] and i >= min(hdr_at, 22):
                hdr_process(cls); st["hdr_done"] = True
            pv_step(i, cls, st)
        if cls == "A":
            while st["nextW"] < 8:
                w_load(st["nextW"]); st["nextW"] += 1

    pv_rest("A")
    g.stamp(7)
    oreduce()
    g.stamp(8)
    def ogather(): A("global_load_dwordx3 v[32:34], v26, s[40:41] sc1")
    ogather(); g.vm.append("og")
    for r in range(4): A(f"v_and_b32 v{12+r}, v61, v{4+r}")
    g.wait(("W", 1))
    A("s_nop 0")
    A(f"v_mfma_f32_16x16x32_bf16 v[44:47], v[12:15], {kreg(0)}, 0")
    A(f"v_mfma_f32_16x16x32_bf16 v[48:51], v[12:15], {kreg(1)}, 0")
    A("v_lshrrev_b32 v52, 4, v1")
    A("v_lshlrev_b32 v52, 2, v52")
    A("v_bfe_u32 v53, v1, 1, 2")
    A("v_add_u32 v52, v52, v53")
    A("s_lshl_b32 s36, s32, 4")
    A("v_add_u32 v52, s36, v52")
    A("v_lshlrev_b32 v52, 13, v52")
    A("v_and_b32 v53, 1, v1")
    A("v_lshl_add_u32 v52, v53, 4, v52")
    A("s_lshl_b32 s36, s2, 5"); A(f"s_add_u32 s36, s36, {FP_OFF}")
    A("v_add_u32 v60, s36, v52")
    for r in range(4): A(f"v_permlane32_swap_b32 v{44+r}, v{48+r}")
    for r in range(4): A(f"v_add_f32_dpp v{44+r}, v{48+r}, v{44+r} row_ror:8 {DPP}")
    for r in range(4): A(f"v_mul_f32 v{56+r}, v63, v{44+r}")
    A("s_waitcnt vmcnt(0)")
    g.lab("L_o_chk")
    tagcheck([32, 33, 34], 52)
    retry("o", ogather)
    g.stamp(9)
    A("s_nop 0")
    red8([32, 33, 34])
    for t in range(3): A(f"v_cvt_pk_bf16_f32 v{32+t}, v{32+t}, v{32+t}")
    areg = [12, 16, 36]
    for t in range(3):
        for r in range(4): A(f"v_and_b32 v{areg[t]+r}, v{32+t}, v{4+r}")
    for t in range(3):
        for u in range(2):
            c = "0" if t == 0 else f"v[{44+4*u}:{47+4*u}]"
            A(f"v_mfma_f32_16x16x32_bf16 v[{44+4*u}:{47+4*u}], v[{areg[t]}:{areg[t]+3}], {kreg(2+2*t+u)}, {c}")
    A("s_nop 7")
    for r in range(4): A(f"v_permlane32_swap_b32 v{44+r}, v{48+r}")
    for r in range(4): A(f"v_add_f32_dpp v{44+r}, v{48+r}, v{44+r} row_ror:8 {DPP}")
    for r in range(4): A(f"v_fma_f32 v{44+r}, v{44+r}, v62, v{56+r}")
    for r in range(4): A(f"v_bfi_b32 v{44+r}, v8, s34, v{44+r}")
    A("s_mov_b32 exec_lo, 0x00ff00ff"); A("s_mov_b32 exec_hi, 0x00ff00ff")
    A("global_store_dwordx4 v60, v[44:47], s[28:29] sc1")
    A("s_mov_b64 exec, -1")
    g.stamp(10)
    A("s_barrier")
    A("s_branch L_exit")

    g.lab("L_tailB")
    g.vm = vm_save
    pv_rest("B")
    g.stamp(7)
    oreduce()
    g.stamp(8)
    A("s_cmp_lt_u32 s32, 7"); A("s_cbranch_scc1 L_exit")
    A("s_cmp_ge_u32 s2, 80"); A("s_cbranch_scc1 L_exit")
    A("s_lshl_b32 s36, s2, 13"); A(f"s_add_u32 s36, s36, {FP_OFF}")
    A("s_add_u32 s40, s28, s36"); A("s_addc_u32 s41, s29, 0")
    A("v_add_u32 v23, 4096, v22")
    A("s_lshr_b32 s36, s2, 4"); A("s_lshl_b32 s36, s36, 7")
    A("s_bfe_u32 s37, s2, 0x10003"); A("s_lshl_b32 s37, s37, 6"); A("s_add_u32 s36, s36, s37")
    A("s_and_b32 s37, s2, 3"); A("s_lshl_b32 s37, s37, 4"); A("s_add_u32 s36, s36, s37")
    A("s_bfe_u32 s37, s2, 0x10002"); A("s_lshl_b32 s37, s37, 2"); A("s_add_u32 s36, s36, s37")
    A("v_and_b32 v52, 1, v1"); A("v_lshlrev_b32 v52, 3, v52")
    A("v_lshrrev_b32 v53, 4, v1")
    A("v_add3_u32 v60, v52, v53, s36")
    A("v_lshlrev_b32 v60, 1, v60")
    A("s_barrier")
    g.stamp(9)
    def fgather():
        for k in range(8): A(f"global_load_dwordx4 {kreg(k)}, v23, s[40:41] offset:{k*1024-4096} sc1")
    fgather()
    A("s_waitcnt vmcnt(0)")
    g.lab("L_f_chk")
    tagcheck(range(KB, KB + 32), 52, pair=True)
    retry("f", fgather, masked=True)
    g.stamp(10)
    for st in (16, 8, 4):
        for r in range(st): A(f"v_add_f32 v{KB+r}, v{KB+r}, v{KB+st+r}")
    A("s_nop 0")
    A(f"v_permlane32_swap_b32 v{KB}, v{KB+2}")
    A(f"v_permlane32_swap_b32 v{KB+1}, v{KB+3}")
    A(f"v_add_f32 v{KB}, v{KB}, v{KB+2}")
    A(f"v_add_f32 v{KB+1}, v{KB+1}, v{KB+3}")
    A("s_nop 1")
    A(f"v_permlane16_swap_b32 v{KB}, v{KB+1}")
    A(f"v_add_f32 v{KB}, v{KB}, v{KB+1}")
    for mode in ("row_ror:8", "row_ror:4", "row_ror:2"):
        A("s_nop 1"); A(f"v_add_f32_dpp v{KB}, v{KB}, v{KB} {mode} {DPP}")
    A(f"v_cvt_pk_bf16_f32 v{KB}, v{KB}, v{KB}")
    A("s_mov_b32 exec_lo, 0x00030003"); A("s_mov_b32 exec_hi, 0x00030003")
    A(f"global_store_short v60, v{KB}, s[24:25]")
    A("s_cmp_lg_u32 s2, 0"); A("s_cbranch_scc1 L_exit")
    A("s_mov_b64 exec, 1")
    A("v_mov_b32 v52, 0"); A("v_mov_b32 v53, s33")
    A("global_store_dword v52, v53, s[28:29]")
    g.lab("L_exit")
    if diag:
        g.stamp(11)
        A("s_mov_b64 exec, 1")
        A("s_lshl_b32 s36, s2, 3"); A("s_add_u32 s36, s36, s32"); A("s_lshl_b32 s36, s36, 7")
        A(f"s_add_u32 s36, s36, {STAMP_OFF}")
        A("v_mov_b32 v52, s36")
        A("s_getreg_b32 s37, hwreg(HW_REG_XCC_ID)")
        A("s_waitcnt lgkmcnt(0)")
        A("s_mov_b32 s88, s46"); A("s_mov_b32 s89, s37")
        for k in range(8):
            for r in range(4): A(f"v_mov_b32 v{KB+4*k+r}, s{64+4*k+r}")
            A(f"global_store_dwordx4 v52, {kreg(k)}, s[28:29] offset:{16*k}")
    g.lab("L_end")
    A("s_endpgm")
    L.append('.section .rodata,"a"'); L.append(".p2align 6"); L.append(f".amdhsa_kernel {KN}")
    L.append("  .amdhsa_next_free_vgpr 256")
    L.append("  .amdhsa_next_free_sgpr 96")
    L.append("  .amdhsa_accum_offset 256")
    L.append("  .amdhsa_group_segment_fixed_size 0"); L.append("  .amdhsa_kernarg_size 104")
    L.append("  .amdhsa_user_sgpr_count 2"); L.append("  .amdhsa_user_sgpr_kernarg_segment_ptr 1")
    L.append("  .amdhsa_system_sgpr_workgroup_id_x 1")
    L.append("  .amdhsa_float_denorm_mode_32 3")
    L.append(".end_amdhsa_kernel")
    return "\n".join(L) + "\n"

if __name__ == "__main__":
    import argparse, hazard
    ap = argparse.ArgumentParser()
    ap.add_argument("-o", default="gated_mix__sliding_block_cached__geglu_ffn__decode.s")
    ap.add_argument("--diag", action="store_true")
    ap.add_argument("-D", type=int, default=6)
    ap.add_argument("-X", type=int, default=3)
    a = ap.parse_args()
    t = gen(D=a.D, X=a.X, diag=a.diag)
    open(a.o, "w").write(t)
    pr = hazard.check(t)
    for x in pr: print(x)
    print(len(pr), "hazard findings")
```

```python
import sys, struct
KN = "gated_mix__sliding_block_cached__geglu_ffn__decode_kernel"

QP_OFF = 4096
HDR_OFF = QP_OFF + 32 * 10240
OP_OFF = HDR_OFF + 32 * 1024
FP_OFF = OP_OFF + 32 * 6144
STAMP_OFF = 1 << 22

LDS_Q = 0
LDS_G = 384
LDS_FLAG = 392
LDS_HID = 400
LDS_F = 448
LDS_O = 512
OSTR = 3072 + 16
LDS_BYTES = LDS_O + 8 * OSTR

def f2u(f): return struct.unpack("<I", struct.pack("<f", f))[0]
LOG2E = 1.4426950408889634

HEADER = open("gated_mix__sliding_block_cached__geglu_ffn__decode.s.ref").read().split("; Override")[0]

class G:
    def __init__(s, diag=False):
        s.L = []; s.vm = []; s.diag = diag
    def A(s, x): s.L.append("    " + x)
    def lab(s, x): s.L.append(x + ":")
    def c(s, x): s.L.append("    ; " + x)
    def vmem(s, x, tag=None):
        s.A(x); s.vm.append(tag)
    def wait(s, tag):
        idx = max(i for i, t in enumerate(s.vm) if t == tag)
        n = len(s.vm) - 1 - idx
        s.A(f"s_waitcnt vmcnt({n})")
    def stamp(s, i):
        if s.diag: s.A(f"s_memrealtime s[{64+2*i}:{65+2*i}]")

KB = 64; VB = 160
def kreg(i): return f"v[{KB+4*i}:{KB+4*i+3}]"
def vreg(i): return f"v[{VB+4*i}:{VB+4*i+3}]"
DPP = "row_mask:0xf bank_mask:0xf"

def gen(D=5, X=2, diag=False, spin=200000, prefetch_code=True, gq_at=24, wrate=2, small_nt=True, hmap='mod', b0early=False):
    g = G(diag); A = g.A
    L = g.L
    NT = " nt" if small_nt else ""
    L.append(HEADER.rstrip())
    L.append(f"; @launch grid=(256,1,1) block=(512,1,1) lds={LDS_BYTES}")
    L.append('.amdgcn_target "amdgcn-amd-amdhsa--gfx950"')
    L.append(".text"); L.append(f".globl {KN}"); L.append(".p2align 8"); L.append(f".type {KN},@function")
    g.lab(KN)
    A("s_cmp_ge_u32 s2, 256"); A("s_cbranch_scc1 L_end")
    A("s_load_dwordx16 s[4:19], s[0:1], 0")
    A("s_load_dwordx8 s[20:27], s[0:1], 64")
    A("s_load_dwordx2 s[28:29], s[0:1], 96")
    g.stamp(0)
    A("v_lshrrev_b32 v52, 6, v0")
    A("v_and_b32 v1, 63, v0")
    A("v_readfirstlane_b32 s32, v52")
    A("v_lshrrev_b32 v2, 3, v1")
    A("v_and_b32 v3, 7, v1")
    A("v_mov_b32 v60, 0")
    if hmap == "mod":
        A("s_and_b32 s30, s2, 31")
        A("s_lshr_b32 s31, s2, 5")
    else:
        A("s_lshr_b32 s30, s2, 3")
        A("s_and_b32 s31, s2, 7")
    if b0early:
        A(f"ds_write_b32 v60, v60 offset:{LDS_FLAG}")
    A("v_mul_u32_u24 v9, 384, v2")
    A("v_lshl_add_u32 v9, v3, 4, v9")
    A("v_mul_u32_u24 v52, 24576, v52")
    A("v_add_u32 v9, v9, v52")
    A("v_add_u32 v9, 3072, v9")
    A("v_add_u32 v10, 9216, v9")
    A("v_add_u32 v11, 18432, v9")
    A("s_mul_i32 s35, s30, 12582912")
    A("s_mul_i32 s36, s31, 196608")
    A("s_add_u32 s35, s35, s36")
    A(f"s_add_u32 s35, s35, {28672*384}")
    if hmap == "mod":
        A("s_and_b32 s39, s30, 7"); A("s_lshl_b32 s39, s39, 2"); A("s_lshr_b32 s36, s30, 3"); A("s_add_u32 s39, s39, s36")
    else:
        A("s_mov_b32 s39, s30")
    A("s_cmp_lt_u32 s32, 5")
    A("s_waitcnt lgkmcnt(0)")
    if b0early: A("s_barrier")
    A("s_load_dword s33, s[28:29], 0")
    A("s_cbranch_scc0 L_proB")

    def kv_load(kind, idx):
        gg, s = divmod(idx, 3)
        base = 9 + gg // 3
        imm = (gg % 3 - 1) * 3072 + s * 128
        if kind == "K": g.vmem(f"global_load_dwordx4 {kreg(idx)}, v{base}, s[6:7] offset:{imm} nt", ("K", idx))
        else: g.vmem(f"global_load_dwordx4 {vreg(idx)}, v{base}, s[8:9] offset:{imm} nt", ("V", idx))

    def consts():
        A("v_and_b32 v52, 1, v1")
        A("v_mov_b32 v53, 0xffff")
        A("v_lshlrev_b32 v52, 4, v52")
        A("v_lshlrev_b32 v53, v52, v53")
        A("v_lshrrev_b32 v52, 1, v3")
        for r in range(4):
            A(f"v_cmp_eq_u32 vcc, {r}, v52")
            A("s_nop 1")
            A(f"v_cndmask_b32 v{4+r}, 0, v53, vcc")
        A("v_mov_b32 v8, 0xff")
        A(f"s_mov_b32 s49, {f2u(192 ** -0.5):#x}")
        A(f"s_mov_b32 s50, {f2u(LOG2E):#x}")
        A(f"s_mov_b32 s46, {spin}")
        A("s_mul_i32 s36, s30, 10240"); A(f"s_add_u32 s36, s36, {QP_OFF}")
        A("s_add_u32 s44, s28, s36"); A("s_addc_u32 s45, s29, 0")

    g.c("waves 0-4: partial projections of x rows [80c, 80c+80)")
    A("s_mul_i32 s36, s30, 384"); A("s_lshl_b32 s37, s32, 7"); A("s_add_u32 s36, s36, s37")
    A("s_mul_i32 s37, s39, 96")
    A("s_cmp_eq_u32 s32, 3")
    A("s_cselect_b32 s40, s16, s18"); A("s_cselect_b32 s41, s17, s19")
    A("s_cmp_lt_u32 s32, 3")
    A("s_cselect_b32 s40, s10, s40"); A("s_cselect_b32 s41, s11, s41")
    A("s_cselect_b32 s36, s36, s37")
    A("s_movk_i32 s38, 3072")
    A("s_cselect_b32 s38, 12288, s38")
    A("s_cselect_b32 s37, 7, 5")
    A("s_add_u32 s40, s40, s36"); A("s_addc_u32 s41, s41, 0")
    A("s_mul_i32 s36, s31, 80")
    A("v_mul_u32_u24 v52, 10, v2")
    A("v_add_u32 v52, s36, v52")
    A("v_lshlrev_b32 v53, 1, v52")
    g.vmem("global_load_dwordx4 v[20:23], v53, s[4:5]" + NT, "x0")
    g.vmem("global_load_dword v24, v53, s[4:5] offset:16" + NT, "x1")
    A("v_mul_u32_u24 v52, s38, v52")
    A("v_min_u32 v53, s37, v3")
    A("v_lshl_add_u32 v52, v53, 4, v52")
    for t in range(10):
        g.vmem(f"global_load_dwordx4 {vreg(t)}, v52, s[40:41] nt", ("P", t))
        if t < 9: A("v_add_u32 v52, s38, v52")
    if not b0early: A("s_barrier")
    A("s_add_u32 s6, s6, s35"); A("s_addc_u32 s7, s7, 0")
    A("s_add_u32 s8, s8, s35"); A("s_addc_u32 s9, s9, 0")
    consts()
    A("s_mov_b32 s47, 0x01000100"); A("s_mov_b32 s48, 0x03020302")
    for r in range(4): A(f"v_mov_b32 v{40+r}, 0")
    A("s_lshl_b32 s36, s32, 11")
    A("s_lshl_b32 s37, s31, 8"); A("s_add_u32 s36, s36, s37")
    A("v_lshlrev_b32 v54, 5, v3")
    A("v_bfe_u32 v53, v1, 4, 1")
    A("v_lshl_add_u32 v54, v53, 4, v54")
    A("v_lshrrev_b32 v53, 5, v1")
    A("v_lshl_add_u32 v54, v53, 3, v54")
    A("v_add_u32 v54, s36, v54")
    for t in range(10):
        g.wait(("P", t))
        if t >= 10 - D: kv_load("K", t - (10 - D))
        a = 12 + 4 * (t & 1)
        A(f"v_perm_b32 v52, v{20 + t//2}, v{20 + t//2}, s{47 + (t & 1)}")
        for r in range(4): A(f"v_and_b32 v{a+r}, v52, v{4+r}")
        A("s_nop 1")
        A(f"v_mfma_f32_16x16x32_bf16 v[40:43], v[{a}:{a+3}], {vreg(t)}, v[40:43]")
    A("s_waitcnt lgkmcnt(0)")
    A("s_add_u32 s33, s33, 1"); A("s_and_b32 s34, s33, 0xff")
    A("s_nop 4")
    A("v_permlane32_swap_b32 v40, v42")
    A("v_permlane32_swap_b32 v41, v43")
    A("s_nop 1")
    A(f"v_add_f32_dpp v40, v42, v40 row_ror:8 {DPP}")
    A(f"v_add_f32_dpp v41, v43, v41 row_ror:8 {DPP}")
    A("v_bfi_b32 v40, v8, s34, v40")
    A("v_bfi_b32 v41, v8, s34, v41")
    A("s_mov_b32 exec_lo, 0x00ff00ff"); A("s_mov_b32 exec_hi, 0x00ff00ff")
    A("global_store_dwordx2 v54, v[40:41], s[44:45] sc1")
    A("s_mov_b64 exec, -1")
    g.stamp(1)
    A("s_branch L_join1")

    g.lab("L_proB")
    g.vm = []
    A("s_add_u32 s6, s6, s35"); A("s_addc_u32 s7, s7, 0")
    A("s_add_u32 s8, s8, s35"); A("s_addc_u32 s9, s9, 0")
    for t in range(D): kv_load("K", t)
    if not b0early: A(f"ds_write_b32 v60, v60 offset:{LDS_FLAG}")
    if prefetch_code:
        A("s_cmp_eq_u32 s32, 5"); A("s_cbranch_scc0 L_nopf")
        A("s_getpc_b64 s[36:37]")
        g.lab("L_pc")
        A(f"s_sub_u32 s36, s36, L_pc-{KN}"); A("s_subb_u32 s37, s37, 0")
        A("v_lshlrev_b32 v53, 7, v1")
        A(f"v_min_u32 v53, L_end-{KN}, v53")
        A("global_load_dword v31, v53, s[36:37]")
        g.lab("L_nopf")
    if not b0early:
        A("s_waitcnt lgkmcnt(0)")
        A("s_barrier")
    consts()
    A("s_waitcnt lgkmcnt(0)")
    A("s_add_u32 s33, s33, 1"); A("s_and_b32 s34, s33, 0xff")
    g.stamp(1)

    g.lab("L_join1")
    g.vm = [("K", i) for i in range(D)]
    GR = VB + 64
    def qgather():
        for p in range(8): A(f"global_load_dwordx4 v[{GR+4*p}:{GR+4*p+3}], v60, s[44:45] offset:{p*256} sc1")

    def retry(name, reload_fn, masked=False):
        A("s_cmp_eq_u64 vcc, 0")
        A(f"s_cbranch_scc1 L_{name}_ok")
        A("s_sub_u32 s46, s46, 1"); A("s_cbranch_scc1 L_%s_ok" % name)
        if masked: A("s_mov_b64 exec, vcc")
        reload_fn()
        A("s_waitcnt vmcnt(0)")
        A(f"s_branch L_{name}_chk")
        g.lab(f"L_{name}_ok")
        if masked: A("s_mov_b64 exec, -1")

    def tagcheck(rlist, tmp, pair=False):
        for r in rlist: A(f"v_xor_b32 v{r}, s34, v{r}")
        rl = list(rlist)
        if len(rl) == 1: A(f"v_mov_b32 v{tmp}, v{rl[0]}"); rl = []
        elif len(rl) == 2: A(f"v_or_b32 v{tmp}, v{rl[0]}, v{rl[1]}"); rl = []
        else: A(f"v_or3_b32 v{tmp}, v{rl[0]}, v{rl[1]}, v{rl[2]}"); rl = rl[3:]
        while len(rl) >= 2:
            A(f"v_or3_b32 v{tmp}, v{tmp}, v{rl[0]}, v{rl[1]}"); rl = rl[2:]
        if rl: A(f"v_or_b32 v{tmp}, v{tmp}, v{rl[0]}")
        if pair:
            A("s_nop 1")
            A(f"v_or_b32_dpp v{tmp}, v{tmp}, v{tmp} quad_perm:[1,0,3,2] {DPP}")
        A(f"v_and_b32 v{tmp}, v8, v{tmp}")
        A(f"v_cmp_ne_u32 vcc, 0, v{tmp}")

    seq = [("K", t) for t in range(24)] + [("V", t) for t in range(24)]
    for pos in range(D, 24 + D):
        if pos == gq_at:
            A("s_cmp_lg_u32 s32, 7"); A("s_cbranch_scc1 L_noqg")
            A("v_min_u32 v52, 47, v1")
            A("v_lshrrev_b32 v53, 4, v52")
            A("v_and_b32 v52, 15, v52")
            A("v_lshlrev_b32 v52, 4, v52")
            A("v_lshl_add_u32 v60, v53, 11, v52")
            qgather()
            g.lab("L_noqg")
        if pos == 24: g.stamp(2)
        g.wait(seq[pos - D]); kv_load(*seq[pos])
        if pos == gq_at + D - 1:
            A("s_cmp_lg_u32 s32, 7"); A("s_cbranch_scc1 L_noq")
            g.lab("L_q_chk")
            tagcheck(range(GR, GR + 32), 52)
            retry("q", qgather)
            for st in (16, 8, 4):
                for r in range(st): A(f"v_add_f32 v{GR+r}, v{GR+r}, v{GR+st+r}")
            A(f"v_cvt_pk_bf16_f32 v52, v{GR}, v{GR+1}")
            A(f"v_cvt_pk_bf16_f32 v53, v{GR+2}, v{GR+3}")
            A("v_min_u32 v54, 47, v1")
            A("v_lshlrev_b32 v54, 3, v54")
            A(f"ds_write_b64 v54, v[52:53] offset:{LDS_Q}")
            A("v_mov_b32 v54, 0"); A("v_mov_b32 v55, 1")
            A(f"ds_write_b32 v54, v55 offset:{LDS_FLAG}")
            g.lab("L_noq")
    g.stamp(3)

    def red8(regs):
        for mode in ("quad_perm:[1,0,3,2]", "quad_perm:[2,3,0,1]", "row_half_mirror"):
            if len(regs) < 3: A(f"s_nop {2 - len(regs)}")
            for r in regs: A(f"v_add_f32_dpp v{r}, v{r}, v{r} {mode} {DPP}")

    def bf16r(dst, src):
        A(f"v_cvt_pk_bf16_f32 v{dst}, v{src}, v{src}")
        A(f"v_and_b32 v{dst}, 0xffff0000, v{dst}")

    def red64(r, op):
        for mode in ("quad_perm:[1,0,3,2]", "quad_perm:[2,3,0,1]", "row_half_mirror", "row_mirror"):
            A("s_nop 1"); A(f"{op}_dpp v{r}, v{r}, v{r} {mode} {DPP}")
        A("s_nop 1"); A(f"{op}_dpp v{r}, v{r}, v{r} row_bcast:15 row_mask:0xa bank_mask:0xf")
        A("s_nop 1"); A(f"{op}_dpp v{r}, v{r}, v{r} row_bcast:31 row_mask:0xc bank_mask:0xf")

    A("v_lshlrev_b32 v52, 4, v3")
    A("v_mov_b32 v53, 0")
    for gg in range(8): A(f"v_mov_b32 v{32+gg}, 0")
    for r in range(12): A(f"v_mov_b32 v{40+r}, 0")
    g.lab("L_qwait")
    A(f"ds_read_b32 v54, v53 offset:{LDS_FLAG}")
    for s in range(3): A(f"ds_read_b128 v[{20+4*s}:{23+4*s}], v52 offset:{LDS_Q + 128*s}")
    A("s_waitcnt lgkmcnt(0)")
    A("v_cmp_eq_u32 vcc, 0, v54")
    A("s_cmp_eq_u64 vcc, 0")
    A("s_cbranch_scc1 L_qready")
    A("s_sleep 2")
    A("s_branch L_qwait")
    g.lab("L_qready")
    g.stamp(4)
    nextV = D
    xs = [12 * (i + 1) // (X + 1) for i in range(X)] if X else []
    for sr in range(12):
        s, r = divmod(sr, 4)
        for _ in range(xs.count(sr)):
            g.wait(("V", nextV - D)); kv_load("V", nextV); nextV += 1
        for gg in range(8):
            A(f"v_dot2c_f32_bf16 v{32+gg}, v{KB + (3*gg+s)*4 + r}, v{20+4*s+r}")
    red8(list(range(32, 40)))
    for p in range(4): A(f"v_cvt_pk_bf16_f32 v{52+p}, v{32+2*p}, v{33+2*p}")
    for p in range(4):
        A(f"v_lshlrev_b32 v{32+2*p}, 16, v{52+p}"); A(f"v_and_b32 v{33+2*p}, 0xffff0000, v{52+p}")
    for gg in range(8): A(f"v_mul_f32 v{32+gg}, s49, v{32+gg}")
    for p in range(4): A(f"v_cvt_pk_bf16_f32 v{52+p}, v{32+2*p}, v{33+2*p}")
    for p in range(4):
        A(f"v_lshlrev_b32 v{32+2*p}, 16, v{52+p}"); A(f"v_and_b32 v{33+2*p}, 0xffff0000, v{52+p}")
    A("v_max3_f32 v52, v32, v33, v34"); A("v_max3_f32 v53, v35, v36, v37")
    A("v_max3_f32 v52, v52, v38, v39"); A("v_max_f32 v52, v52, v53")
    def red8groups(r, op):
        A("s_nop 1"); A(f"{op}_dpp v{r}, v{r}, v{r} row_ror:8 {DPP}")
        A("s_nop 1"); A(f"{op}_dpp v{r}, v{r}, v{r} row_bcast:15 row_mask:0xa bank_mask:0xf")
        A("s_nop 1"); A(f"{op}_dpp v{r}, v{r}, v{r} row_bcast:31 row_mask:0xc bank_mask:0xf")
    red8groups(52, "v_max_f32")
    A("v_mul_f32 v52, s50, v52")
    g.wait(("V", nextV - D)); kv_load("V", nextV); nextV += 1
    A("v_readlane_b32 s36, v52, 63")
    A("s_nop 1")
    A("v_mov_b32 v56, s36")
    for gg in range(8): A(f"v_fma_f32 v{32+gg}, v{32+gg}, s50, -v56")
    for gg in range(8): A(f"v_exp_f32 v{32+gg}, v{32+gg}")
    A("v_add_f32 v52, v32, v33"); A("v_add_f32 v53, v34, v35"); A("v_add_f32 v54, v36, v37")
    A("v_add_f32 v57, v38, v39")
    A("v_add_f32 v52, v52, v53"); A("v_add_f32 v57, v57, v54"); A("v_add_f32 v57, v57, v52")
    for gg in range(8): A(f"v_cvt_pk_bf16_f32 v{32+gg}, v{32+gg}, v{32+gg}")
    red8groups(57, "v_add_f32")
    A("v_mov_b32 v58, s33"); A("v_mov_b32 v59, s33")
    A("s_lshl_b32 s36, s30, 10"); A(f"s_add_u32 s36, s36, {HDR_OFF}")
    A("s_add_u32 s42, s28, s36"); A("s_addc_u32 s43, s29, 0")
    A("s_lshl_b32 s36, s31, 3"); A("s_add_u32 s36, s36, s32"); A("s_lshl_b32 s36, s36, 4")
    A("v_mov_b32 v52, s36")
    A("s_mov_b32 exec_lo, 0"); A("s_mov_b32 exec_hi, 0x80000000")
    g.vmem("global_store_dwordx4 v52, v[56:59], s[42:43] sc1", "hdrst")
    A("s_mov_b64 exec, -1")
    g.stamp(5)
    g.wait(("V", nextV - D)); kv_load("V", nextV); nextV += 1
    A("s_mul_i32 s36, s30, 192"); A("s_mul_i32 s37, s31, 24"); A("s_add_u32 s36, s36, s37"); A("s_mul_i32 s36, s36, 1280")
    A("s_add_u32 s12, s12, s36"); A("s_addc_u32 s13, s13, 0")
    A("s_mul_i32 s36, s39, 48"); A("s_mul_i32 s37, s31, 6"); A("s_add_u32 s36, s36, s37"); A("s_mul_i32 s36, s36, 1280")
    A("s_add_u32 s20, s20, s36"); A("s_addc_u32 s21, s21, 0")
    A("s_lshl_b32 s36, s32, 8")
    A("v_lshl_add_u32 v53, v3, 4, s36")
    A("v_mul_u32_u24 v20, 3840, v2")
    A("v_add_u32 v20, v20, v53")
    A("v_min_u32 v54, 5, v2")
    A("v_mul_u32_u24 v21, 1280, v54")
    A("v_add_u32 v21, v21, v53")
    A("v_lshlrev_b32 v22, 4, v1")
    A(f"s_mul_i32 s36, s32, {OSTR}")
    A("v_add_u32 v23, s36, v22")
    A("s_mul_i32 s36, s32, 6")
    A("v_add_u32 v54, s36, v54")
    A("v_lshrrev_b32 v55, 4, v54"); A("v_lshlrev_b32 v24, 10, v55")
    A("v_bfe_u32 v55, v54, 1, 3"); A("v_lshl_add_u32 v24, v55, 4, v24")
    A("v_and_b32 v55, 1, v54"); A("v_lshl_add_u32 v24, v55, 8, v24")
    A(f"v_mul_u32_u24 v55, {OSTR}, v3")
    A("v_add_u32 v24, v24, v55")
    A("s_mul_i32 s36, s30, 6144"); A(f"s_add_u32 s36, s36, {OP_OFF}")
    A("s_add_u32 s40, s28, s36"); A("s_addc_u32 s41, s29, 0")
    A("s_mul_i32 s36, s32, 768"); A("s_mul_i32 s37, s31, 96"); A("s_add_u32 s36, s36, s37")
    A("v_lshl_add_u32 v25, v2, 4, s36")
    A("s_mul_i32 s36, s31, 768")
    A("v_mul_u32_u24 v26, 96, v3")
    A("v_mul_u32_u24 v55, 12, v2")
    A("v_add3_u32 v26, v26, v55, s36")
    A("v_lshlrev_b32 v27, 2, v3")
    A("v_lshlrev_b32 v28, 2, v2")
    A("v_mov_b32 v29, 0")

    wl = [("D", 0), ("D", 1)] + [(t, u) for t in range(3) for u in range(2)]
    def w_load(i):
        t, u = wl[i]
        if t == "D": g.vmem(f"global_load_dwordx4 {kreg(i)}, v21, s[20:21] offset:{u*128} nt", ("W", i))
        else: g.vmem(f"global_load_dwordx4 {kreg(i)}, v20, s[12:13] offset:{t*1280+u*128} nt", ("W", i))

    state = dict(nextV=nextV, nextW=0)
    def pv_step(idx, cls, st):
        gg, s = divmod(idx, 3)
        a = 12 + 4 * (gg & 1)
        if s == 0:
            for r in range(4): A(f"v_and_b32 v{a+r}, v{32+gg}, v{4+r}")
        g.wait(("V", idx))
        issued = False
        if st["nextV"] < 24:
            if st["nextV"] <= idx + D:
                kv_load("V", st["nextV"]); st["nextV"] += 1; issued = True
        elif cls == "A":
            for _ in range(wrate):
                if st["nextW"] < 8:
                    w_load(st["nextW"]); st["nextW"] += 1; issued = True
        if s == 0 and not issued: A("s_nop 0")
        A(f"v_mfma_f32_16x16x32_bf16 v[{40+4*s}:{43+4*s}], v[{a}:{a+3}], {vreg(idx)}, v[{40+4*s}:{43+4*s}]")

    idx = 0
    while state["nextV"] < 24:
        pv_step(idx, "C", state); idx += 1
    g.stamp(6)
    A("s_cmp_lt_u32 s32, 5"); A("s_cbranch_scc0 L_tailB")
    vm_save = list(g.vm)

    def owrite():
        for s in range(3): A(f"ds_write_b128 v23, v[{40+4*s}:{43+4*s}] offset:{LDS_O + 1024*s}")
    def oreduce(cls):
        A("s_waitcnt lgkmcnt(0)")
        A("s_barrier")
        A(f"ds_read_b128 v[40:43], v24 offset:{LDS_O}")
        A(f"ds_read_b128 v[44:47], v24 offset:{LDS_O + 640}")
        A(f"ds_read_b32 v48, v27 offset:{LDS_F}")
        if cls == "A":
            A(f"ds_read_b32 v61, v28 offset:{LDS_HID}")
            A(f"ds_read_b64 v[62:63], v29 offset:{LDS_G}")
            A("s_waitcnt lgkmcnt(0)" if diag else "s_waitcnt lgkmcnt(2)")
        else:
            A("s_waitcnt lgkmcnt(0)")
        for r in range(4): A(f"v_add_f32 v{40+r}, v{40+r}, v{44+r}")
        for r in range(4): A(f"v_mul_f32 v{40+r}, v{40+r}, v48")
        red8([40, 41, 42, 43])
        for r in range(4): A(f"v_bfi_b32 v{40+r}, v8, s34, v{40+r}")
        A("s_mov_b32 exec_lo, 0x01010101"); A("s_mov_b32 exec_hi, 0x00000101")
        g.vmem("global_store_dwordx4 v25, v[40:43], s[40:41] sc1", "opst")
        A("s_mov_b64 exec, -1")

    def pv_rest(cls):
        st = dict(state)
        for i in range(idx, 24):
            pv_step(i, cls, st)
        if cls == "A":
            while st["nextW"] < 8:
                w_load(st["nextW"]); st["nextW"] += 1

    A("v_lshrrev_b32 v52, 4, v1")
    A("v_lshlrev_b32 v52, 2, v52")
    A("v_bfe_u32 v53, v1, 1, 2")
    A("v_add_u32 v52, v52, v53")
    A("s_lshl_b32 s36, s32, 4")
    A("v_add_u32 v52, s36, v52")
    A("v_lshlrev_b32 v52, 13, v52")
    A("v_and_b32 v53, 1, v1")
    A("v_lshl_add_u32 v52, v53, 4, v52")
    A("s_lshl_b32 s36, s2, 5"); A(f"s_add_u32 s36, s36, {FP_OFF}")
    A("v_add_u32 v60, s36, v52")
    pv_rest("A")
    g.stamp(7)
    A("s_nop 6")
    owrite()
    oreduce("A")
    g.stamp(8)
    def ogather(): A("global_load_dwordx3 v[32:34], v26, s[40:41] sc1")
    ogather(); g.vm.append("og")
    A("s_waitcnt lgkmcnt(0)")
    for r in range(4): A(f"v_and_b32 v{12+r}, v61, v{4+r}")
    g.wait(("W", 1))
    A("s_nop 0")
    A(f"v_mfma_f32_16x16x32_bf16 v[44:47], v[12:15], {kreg(0)}, 0")
    A(f"v_mfma_f32_16x16x32_bf16 v[48:51], v[12:15], {kreg(1)}, 0")
    A("s_nop 7")
    for r in range(4): A(f"v_permlane32_swap_b32 v{44+r}, v{48+r}")
    for r in range(4): A(f"v_add_f32_dpp v{44+r}, v{48+r}, v{44+r} row_ror:8 {DPP}")
    for r in range(4): A(f"v_mul_f32 v{56+r}, v63, v{44+r}")
    A("s_waitcnt vmcnt(0)")
    g.lab("L_o_chk")
    tagcheck([32, 33, 34], 52)
    retry("o", ogather)
    g.stamp(9)
    red8([32, 33, 34])
    for t in range(3): A(f"v_cvt_pk_bf16_f32 v{32+t}, v{32+t}, v{32+t}")
    areg = [12, 16, 36]
    for t in range(3):
        for r in range(4): A(f"v_and_b32 v{areg[t]+r}, v{32+t}, v{4+r}")
    for t in range(3):
        for u in range(2):
            c = "0" if t == 0 else f"v[{44+4*u}:{47+4*u}]"
            A(f"v_mfma_f32_16x16x32_bf16 v[{44+4*u}:{47+4*u}], v[{areg[t]}:{areg[t]+3}], {kreg(2+2*t+u)}, {c}")
    A("s_nop 7")
    for r in range(4): A(f"v_permlane32_swap_b32 v{44+r}, v{48+r}")
    for r in range(4): A(f"v_add_f32_dpp v{44+r}, v{48+r}, v{44+r} row_ror:8 {DPP}")
    for r in range(4): A(f"v_fma_f32 v{44+r}, v{44+r}, v62, v{56+r}")
    for r in range(4): A(f"v_bfi_b32 v{44+r}, v8, s34, v{44+r}")
    A("s_mov_b32 exec_lo, 0x00ff00ff"); A("s_mov_b32 exec_hi, 0x00ff00ff")
    A("global_store_dwordx4 v60, v[44:47], s[28:29] sc1")
    A("s_mov_b64 exec, -1")
    g.stamp(10)
    A("s_barrier")
    A("s_branch L_exit")

    g.lab("L_tailB")
    g.vm = vm_save
    SJ = KB
    def hdrgather(): A(f"global_load_dwordx4 v[{SJ}:{SJ+3}], v22, s[42:43] sc1")
    def hgather():
        A(f"global_load_dword v{SJ}, v60, s[44:45] sc1")
        A(f"global_load_dword v{SJ+1}, v60, s[44:45] offset:2048 sc1")
    A("s_cmp_eq_u32 s32, 7"); A("s_cbranch_scc1 L_sjG")
    A("v_min_u32 v52, 5, v2")
    A("s_mul_i32 s36, s31, 6")
    A("v_add_u32 v52, s36, v52")
    A("v_lshlrev_b32 v52, 2, v52")
    A("v_lshl_add_u32 v60, v3, 8, v52")
    A("v_add_u32 v60, 6144, v60")
    A("s_cmp_eq_u32 s32, 6"); A("s_cbranch_scc1 L_sjH")
    hdrgather()
    A("s_branch L_sjdone")
    g.lab("L_sjH")
    hgather()
    A("s_branch L_sjdone")
    g.lab("L_sjG")
    A("v_mul_u32_u24 v53, 20, v1")
    A(f"global_load_dwordx4 v[{SJ}:{SJ+3}], v53, s[4:5]" + NT)
    A(f"global_load_dword v{SJ+4}, v53, s[4:5] offset:16" + NT)
    A(f"global_load_dwordx4 v[{SJ+6}:{SJ+9}], v53, s[22:23]" + NT)
    A(f"global_load_dword v{SJ+10}, v53, s[22:23] offset:16" + NT)
    g.lab("L_sjdone")
    g.vm.append("sj")
    pv_rest("B")
    g.stamp(7)
    A("s_nop 6")
    owrite()
    A("s_waitcnt vmcnt(0)")
    A("s_cmp_eq_u32 s32, 7"); A("s_cbranch_scc1 L_jobG")
    A("s_cmp_eq_u32 s32, 6"); A("s_cbranch_scc1 L_h_chk")
    g.lab("L_hd_chk")
    A(f"v_xor_b32 v52, s33, v{SJ+2}"); A(f"v_xor_b32 v53, s33, v{SJ+3}")
    A("v_or_b32 v52, v52, v53")
    A("v_cmp_ne_u32 vcc, 0, v52")
    retry("hd", hdrgather)
    A(f"v_mov_b32 v52, v{SJ}")
    red64(52, "v_max_f32")
    A("s_nop 0")
    A("v_readlane_b32 s36, v52, 63")
    A("s_nop 1")
    A(f"v_subrev_f32 v52, s36, v{SJ}")
    A("v_exp_f32 v52, v52")
    A("s_nop 0")
    A(f"v_mul_f32 v53, v52, v{SJ+1}")
    red64(53, "v_add_f32")
    A("v_rcp_f32 v53, v53")
    A("s_nop 0")
    A("v_readlane_b32 s36, v53, 63")
    A("v_cmp_eq_u32 vcc, s31, v2")
    A("s_nop 0")
    A("v_mul_f32 v52, s36, v52")
    A("s_mov_b64 exec, vcc")
    A(f"ds_write_b32 v27, v52 offset:{LDS_F}")
    A("s_mov_b64 exec, -1")
    A("s_branch L_B2B")
    g.lab("L_h_chk")
    tagcheck([SJ, SJ + 1], 52)
    retry("h", hgather)
    red8([SJ, SJ + 1])
    bf16r(52, SJ); bf16r(53, SJ + 1)
    A("v_mul_f32 v54, v52, v52")
    A(f"v_mov_b32 v55, {f2u(0.044715):#x}")
    A("v_fma_f32 v54, v54, v55, 1.0")
    A("v_mul_f32 v54, v54, v52")
    A(f"v_mul_f32 v54, {f2u(-2 * 0.7978845608028654 * LOG2E):#x}, v54")
    A("v_exp_f32 v54, v54")
    A("s_nop 0")
    A("v_add_f32 v54, 1.0, v54")
    A("v_rcp_f32 v54, v54")
    A("s_nop 0")
    A("v_mul_f32 v54, v54, v52")
    bf16r(54, 54)
    A("v_mul_f32 v54, v54, v53")
    A("v_cmp_gt_u32 vcc, 6, v2")
    A("v_cvt_pk_bf16_f32 v54, v54, v54")
    A("s_nop 0")
    A("v_cndmask_b32 v54, 0, v54, vcc")
    A(f"ds_write_b32 v28, v54 offset:{LDS_HID}")
    A("s_branch L_B2B")
    g.lab("L_jobG")
    A("v_mov_b32 v56, 0")
    for i in range(5):
        xr = SJ + i; wr = SJ + 6 + i
        A(f"v_lshlrev_b32 v52, 16, v{xr}"); A(f"v_and_b32 v53, 0xffff0000, v{xr}")
        A(f"v_lshlrev_b32 v54, 16, v{wr}"); A(f"v_and_b32 v55, 0xffff0000, v{wr}")
        A("v_mul_f32 v52, v52, v54"); A("v_mul_f32 v53, v53, v55")
        A("v_cvt_pk_bf16_f32 v52, v52, v53")
        A("v_lshlrev_b32 v53, 16, v52"); A("v_and_b32 v52, 0xffff0000, v52")
        A("v_add_f32 v56, v56, v53"); A("v_add_f32 v56, v56, v52")
    red64(56, "v_add_f32")
    A("s_nop 0")
    A("v_readlane_b32 s36, v56, 63")
    A("s_nop 1")
    A("v_mov_b32 v56, s36")
    bf16r(56, 56)
    A(f"v_mul_f32 v56, {f2u(-LOG2E):#x}, v56")
    A("v_exp_f32 v56, v56")
    A("s_nop 0")
    A("v_add_f32 v56, 1.0, v56")
    A("v_rcp_f32 v56, v56")
    A("s_nop 0")
    bf16r(56, 56)
    A("v_sub_f32 v57, 1.0, v56")
    bf16r(57, 57)
    A(f"ds_write_b64 v29, v[56:57] offset:{LDS_G}")
    g.lab("L_B2B")
    g.stamp(9)
    oreduce("B")
    g.stamp(8)
    A("s_cmp_lt_u32 s32, 7"); A("s_cbranch_scc1 L_exit")
    A("s_cmp_ge_u32 s2, 80"); A("s_cbranch_scc1 L_exit")
    A("s_lshl_b32 s36, s2, 13"); A(f"s_add_u32 s36, s36, {FP_OFF}")
    A("s_add_u32 s40, s28, s36"); A("s_addc_u32 s41, s29, 0")
    A("v_add_u32 v23, 4096, v22")
    A("s_lshr_b32 s36, s2, 4"); A("s_lshl_b32 s36, s36, 7")
    A("s_bfe_u32 s37, s2, 0x10003"); A("s_lshl_b32 s37, s37, 6"); A("s_add_u32 s36, s36, s37")
    A("s_and_b32 s37, s2, 3"); A("s_lshl_b32 s37, s37, 4"); A("s_add_u32 s36, s36, s37")
    A("s_bfe_u32 s37, s2, 0x10002"); A("s_lshl_b32 s37, s37, 2"); A("s_add_u32 s36, s36, s37")
    A("v_and_b32 v52, 1, v1"); A("v_lshlrev_b32 v52, 3, v52")
    A("v_lshrrev_b32 v53, 4, v1")
    A("v_add3_u32 v60, v52, v53, s36")
    A("v_lshlrev_b32 v60, 1, v60")
    A("s_barrier")
    def fgather():
        for k in range(8): A(f"global_load_dwordx4 {kreg(k)}, v23, s[40:41] offset:{k*1024-4096} sc1")
    fgather()
    A("s_waitcnt vmcnt(0)")
    g.lab("L_f_chk")
    tagcheck(range(KB, KB + 32), 52, pair=True)
    retry("f", fgather, masked=True)
    g.stamp(10)
    for st in (16, 8, 4):
        for r in range(st): A(f"v_add_f32 v{KB+r}, v{KB+r}, v{KB+st+r}")
    A("s_nop 0")
    A(f"v_permlane32_swap_b32 v{KB}, v{KB+2}")
    A(f"v_permlane32_swap_b32 v{KB+1}, v{KB+3}")
    A(f"v_add_f32 v{KB}, v{KB}, v{KB+2}")
    A(f"v_add_f32 v{KB+1}, v{KB+1}, v{KB+3}")
    A("s_nop 1")
    A(f"v_permlane16_swap_b32 v{KB}, v{KB+1}")
    A(f"v_add_f32 v{KB}, v{KB}, v{KB+1}")
    for mode in ("row_ror:8", "row_ror:4", "row_ror:2"):
        A("s_nop 1"); A(f"v_add_f32_dpp v{KB}, v{KB}, v{KB} {mode} {DPP}")
    A(f"v_cvt_pk_bf16_f32 v{KB}, v{KB}, v{KB}")
    A("s_mov_b32 exec_lo, 0x00030003"); A("s_mov_b32 exec_hi, 0x00030003")
    A(f"global_store_short v60, v{KB}, s[24:25]")
    A("s_cmp_lg_u32 s2, 0"); A("s_cbranch_scc1 L_exit")
    A("s_mov_b64 exec, 1")
    A("v_mov_b32 v52, 0"); A("v_mov_b32 v53, s33")
    A("global_store_dword v52, v53, s[28:29]")
    g.lab("L_exit")
    if diag:
        g.stamp(11)
        A("s_mov_b64 exec, 1")
        A("s_lshl_b32 s36, s2, 3"); A("s_add_u32 s36, s36, s32"); A("s_lshl_b32 s36, s36, 7")
        A(f"s_add_u32 s36, s36, {STAMP_OFF}")
        A("v_mov_b32 v52, s36")
        A("s_getreg_b32 s37, hwreg(HW_REG_XCC_ID)")
        A("s_waitcnt lgkmcnt(0)")
        A("s_mov_b32 s88, s46"); A("s_mov_b32 s89, s37")
        for k in range(8):
            for r in range(4): A(f"v_mov_b32 v{KB+4*k+r}, s{64+4*k+r}")
            A(f"global_store_dwordx4 v52, {kreg(k)}, s[28:29] offset:{16*k}")
    g.lab("L_end")
    A("s_endpgm")
    L.append('.section .rodata,"a"'); L.append(".p2align 6"); L.append(f".amdhsa_kernel {KN}")
    L.append("  .amdhsa_next_free_vgpr 256")
    L.append("  .amdhsa_next_free_sgpr 96")
    L.append("  .amdhsa_accum_offset 256")
    L.append("  .amdhsa_group_segment_fixed_size 0"); L.append("  .amdhsa_kernarg_size 104")
    L.append("  .amdhsa_user_sgpr_count 2"); L.append("  .amdhsa_user_sgpr_kernarg_segment_ptr 1")
    L.append("  .amdhsa_system_sgpr_workgroup_id_x 1")
    L.append("  .amdhsa_float_denorm_mode_32 3")
    L.append(".end_amdhsa_kernel")
    return "\n".join(L) + "\n"

if __name__ == "__main__":
    import argparse, hazard, ast
    ap = argparse.ArgumentParser()
    ap.add_argument("-o", default="gated_mix__sliding_block_cached__geglu_ffn__decode.s")
    ap.add_argument("kv", nargs="*")
    a = ap.parse_args()
    kw = {}
    for x in a.kv:
        k, v = x.split("="); kw[k] = ast.literal_eval(v)
    t = gen(**kw)
    open(a.o, "w").write(t)
    pr = hazard.check(t)
    for x in pr: print(x)
    print(len(pr), "hazard findings")
```

```python
import sys, struct
KN = "gated_mix__sliding_block_cached__geglu_ffn__decode_kernel"

QP_OFF = 4096
HDR_OFF = QP_OFF + 32 * 10240
OP_OFF = HDR_OFF + 32 * 1024
FP_OFF = OP_OFF + 32 * 6144
STAMP_OFF = 1 << 22

LDS_Q = 0
LDS_G = 384
LDS_FLAG = 392
LDS_HID = 400
LDS_F = 448
LDS_O = 512
OSTR = 3072 + 16
LDS_BYTES = LDS_O + 8 * OSTR

def f2u(f): return struct.unpack("<I", struct.pack("<f", f))[0]
LOG2E = 1.4426950408889634

HEADER = open("gated_mix__sliding_block_cached__geglu_ffn__decode.s.ref").read().split("; Override")[0]

class G:
    def __init__(s, diag=False):
        s.L = []; s.vm = []; s.diag = diag
    def A(s, x): s.L.append("    " + x)
    def lab(s, x): s.L.append(x + ":")
    def c(s, x): s.L.append("    ; " + x)
    def vmem(s, x, tag=None):
        s.A(x); s.vm.append(tag)
    def wait(s, tag):
        idx = max(i for i, t in enumerate(s.vm) if t == tag)
        n = len(s.vm) - 1 - idx
        s.A(f"s_waitcnt vmcnt({n})")
    def stamp(s, i):
        if s.diag: s.A(f"s_memrealtime s[{64+2*i}:{65+2*i}]")

KB = 64; VB = 160
def kreg(i): return f"v[{KB+4*i}:{KB+4*i+3}]"
def vreg(i): return f"v[{VB+4*i}:{VB+4*i+3}]"
DPP = "row_mask:0xf bank_mask:0xf"

def gen(D=5, X=2, diag=False, spin=200000, prefetch_code=True, gq_at=24, wrate=2, small_nt=True, hmap='mod', b0early=False, dbgsum=False):
    g = G(diag); A = g.A
    L = g.L
    NT = " nt" if small_nt else ""
    L.append(HEADER.rstrip())
    L.append(f"; @launch grid=(256,1,1) block=(512,1,1) lds={LDS_BYTES}")
    L.append('.amdgcn_target "amdgcn-amd-amdhsa--gfx950"')
    L.append(".text"); L.append(f".globl {KN}"); L.append(".p2align 8"); L.append(f".type {KN},@function")
    g.lab(KN)
    A("s_cmp_ge_u32 s2, 256"); A("s_cbranch_scc1 L_end")
    A("s_load_dwordx16 s[4:19], s[0:1], 0")
    A("s_load_dwordx8 s[20:27], s[0:1], 64")
    A("s_load_dwordx2 s[28:29], s[0:1], 96")
    g.stamp(0)
    A("v_lshrrev_b32 v52, 6, v0")
    A("v_and_b32 v1, 63, v0")
    A("v_readfirstlane_b32 s32, v52")
    A("v_lshrrev_b32 v2, 3, v1")
    A("v_and_b32 v3, 7, v1")
    A("v_mov_b32 v60, 0")
    if hmap == "mod":
        A("s_and_b32 s30, s2, 31")
        A("s_lshr_b32 s31, s2, 5")
    else:
        A("s_lshr_b32 s30, s2, 3")
        A("s_and_b32 s31, s2, 7")
    if b0early:
        A(f"ds_write_b32 v60, v60 offset:{LDS_FLAG}")
    A("v_mul_u32_u24 v9, 384, v2")
    A("v_lshl_add_u32 v9, v3, 4, v9")
    A("v_mul_u32_u24 v52, 24576, v52")
    A("v_add_u32 v9, v9, v52")
    A("v_add_u32 v9, 3072, v9")
    A("v_add_u32 v10, 9216, v9")
    A("v_add_u32 v11, 18432, v9")
    A("s_mul_i32 s35, s30, 12582912")
    A("s_mul_i32 s36, s31, 196608")
    A("s_add_u32 s35, s35, s36")
    A(f"s_add_u32 s35, s35, {28672*384}")
    if hmap == "mod":
        A("s_and_b32 s39, s30, 7"); A("s_lshl_b32 s39, s39, 2"); A("s_lshr_b32 s36, s30, 3"); A("s_add_u32 s39, s39, s36")
    else:
        A("s_mov_b32 s39, s30")
    A("s_cmp_lt_u32 s32, 5")
    A("s_waitcnt lgkmcnt(0)")
    if b0early: A("s_barrier")
    A("s_load_dword s33, s[28:29], 0")
    A("s_cbranch_scc0 L_proB")

    def kv_load(kind, idx):
        gg, s = divmod(idx, 3)
        base = 9 + gg // 3
        imm = (gg % 3 - 1) * 3072 + s * 128
        if kind == "K": g.vmem(f"global_load_dwordx4 {kreg(idx)}, v{base}, s[6:7] offset:{imm} nt", ("K", idx))
        else: g.vmem(f"global_load_dwordx4 {vreg(idx)}, v{base}, s[8:9] offset:{imm} nt", ("V", idx))

    def consts():
        A("v_and_b32 v52, 1, v1")
        A("v_mov_b32 v53, 0xffff")
        A("v_lshlrev_b32 v52, 4, v52")
        A("v_lshlrev_b32 v53, v52, v53")
        A("v_lshrrev_b32 v52, 1, v3")
        for r in range(4):
            A(f"v_cmp_eq_u32 vcc, {r}, v52")
            A("s_nop 1")
            A(f"v_cndmask_b32 v{4+r}, 0, v53, vcc")
        A("v_mov_b32 v8, 0xff")
        A(f"s_mov_b32 s49, {f2u(192 ** -0.5):#x}")
        A(f"s_mov_b32 s50, {f2u(LOG2E):#x}")
        A(f"s_mov_b32 s46, {spin}")
        A("s_mul_i32 s36, s30, 10240"); A(f"s_add_u32 s36, s36, {QP_OFF}")
        A("s_add_u32 s44, s28, s36"); A("s_addc_u32 s45, s29, 0")

    g.c("waves 0-4: partial projections of x rows [80c, 80c+80)")
    A("s_mul_i32 s36, s30, 384"); A("s_lshl_b32 s37, s32, 7"); A("s_add_u32 s36, s36, s37")
    A("s_mul_i32 s37, s39, 96")
    A("s_cmp_eq_u32 s32, 3")
    A("s_cselect_b32 s40, s16, s18"); A("s_cselect_b32 s41, s17, s19")
    A("s_cmp_lt_u32 s32, 3")
    A("s_cselect_b32 s40, s10, s40"); A("s_cselect_b32 s41, s11, s41")
    A("s_cselect_b32 s36, s36, s37")
    A("s_movk_i32 s38, 3072")
    A("s_cselect_b32 s38, 12288, s38")
    A("s_cselect_b32 s37, 7, 5")
    A("s_add_u32 s40, s40, s36"); A("s_addc_u32 s41, s41, 0")
    A("s_mul_i32 s36, s31, 80")
    A("v_mul_u32_u24 v52, 10, v2")
    A("v_add_u32 v52, s36, v52")
    A("v_lshlrev_b32 v53, 1, v52")
    g.vmem("global_load_dwordx4 v[20:23], v53, s[4:5]" + NT, "x0")
    g.vmem("global_load_dword v24, v53, s[4:5] offset:16" + NT, "x1")
    A("v_mul_u32_u24 v52, s38, v52")
    A("v_min_u32 v53, s37, v3")
    A("v_lshl_add_u32 v52, v53, 4, v52")
    for t in range(10):
        g.vmem(f"global_load_dwordx4 {vreg(t)}, v52, s[40:41] nt", ("P", t))
        if t < 9: A("v_add_u32 v52, s38, v52")
    if not b0early: A("s_barrier")
    A("s_add_u32 s6, s6, s35"); A("s_addc_u32 s7, s7, 0")
    A("s_add_u32 s8, s8, s35"); A("s_addc_u32 s9, s9, 0")
    consts()
    A("s_mov_b32 s47, 0x01000100"); A("s_mov_b32 s48, 0x03020302")
    for r in range(4): A(f"v_mov_b32 v{40+r}, 0")
    A("s_lshl_b32 s36, s32, 11")
    A("s_lshl_b32 s37, s31, 8"); A("s_add_u32 s36, s36, s37")
    A("v_lshlrev_b32 v54, 5, v3")
    A("v_bfe_u32 v53, v1, 4, 1")
    A("v_lshl_add_u32 v54, v53, 4, v54")
    A("v_lshrrev_b32 v53, 5, v1")
    A("v_lshl_add_u32 v54, v53, 3, v54")
    A("v_add_u32 v54, s36, v54")
    for t in range(10):
        g.wait(("P", t))
        if t >= 10 - D: kv_load("K", t - (10 - D))
        a = 12 + 4 * (t & 1)
        A(f"v_perm_b32 v52, v{20 + t//2}, v{20 + t//2}, s{47 + (t & 1)}")
        for r in range(4): A(f"v_and_b32 v{a+r}, v52, v{4+r}")
        A("s_nop 1")
        A(f"v_mfma_f32_16x16x32_bf16 v[40:43], v[{a}:{a+3}], {vreg(t)}, v[40:43]")
    A("s_waitcnt lgkmcnt(0)")
    A("s_add_u32 s33, s33, 1"); A("s_and_b32 s34, s33, 0xff")
    A("s_nop 4")
    A("v_permlane32_swap_b32 v40, v42")
    A("v_permlane32_swap_b32 v41, v43")
    A("s_nop 1")
    A(f"v_add_f32_dpp v40, v42, v40 row_ror:8 {DPP}")
    A(f"v_add_f32_dpp v41, v43, v41 row_ror:8 {DPP}")
    A("v_bfi_b32 v40, v8, s34, v40")
    A("v_bfi_b32 v41, v8, s34, v41")
    A("s_mov_b32 exec_lo, 0x00ff00ff"); A("s_mov_b32 exec_hi, 0x00ff00ff")
    A("global_store_dwordx2 v54, v[40:41], s[44:45] sc1")
    A("s_mov_b64 exec, -1")
    g.stamp(1)
    A("s_branch L_join1")

    g.lab("L_proB")
    g.vm = []
    A("s_add_u32 s6, s6, s35"); A("s_addc_u32 s7, s7, 0")
    A("s_add_u32 s8, s8, s35"); A("s_addc_u32 s9, s9, 0")
    for t in range(D): kv_load("K", t)
    if not b0early: A(f"ds_write_b32 v60, v60 offset:{LDS_FLAG}")
    if prefetch_code:
        A("s_cmp_eq_u32 s32, 5"); A("s_cbranch_scc0 L_nopf")
        A("s_getpc_b64 s[36:37]")
        g.lab("L_pc")
        A(f"s_sub_u32 s36, s36, L_pc-{KN}"); A("s_subb_u32 s37, s37, 0")
        A("v_lshlrev_b32 v53, 7, v1")
        A(f"v_min_u32 v53, L_end-{KN}, v53")
        A("global_load_dword v31, v53, s[36:37]")
        g.lab("L_nopf")
    if not b0early:
        A("s_waitcnt lgkmcnt(0)")
        A("s_barrier")
    consts()
    A("s_waitcnt lgkmcnt(0)")
    A("s_add_u32 s33, s33, 1"); A("s_and_b32 s34, s33, 0xff")
    g.stamp(1)

    g.lab("L_join1")
    g.vm = [("K", i) for i in range(D)]
    GR = VB + 64
    def qgather():
        for p in range(8): A(f"global_load_dwordx4 v[{GR+4*p}:{GR+4*p+3}], v60, s[44:45] offset:{p*256} sc1")

    def retry(name, reload_fn, masked=False):
        A("s_cmp_eq_u64 vcc, 0")
        A(f"s_cbranch_scc1 L_{name}_ok")
        A("s_sub_u32 s46, s46, 1"); A("s_cbranch_scc1 L_%s_ok" % name)
        if masked: A("s_mov_b64 exec, vcc")
        reload_fn()
        A("s_waitcnt vmcnt(0)")
        A(f"s_branch L_{name}_chk")
        g.lab(f"L_{name}_ok")
        if masked: A("s_mov_b64 exec, -1")

    def tagcheck(rlist, tmp, pair=False):
        for r in rlist: A(f"v_xor_b32 v{r}, s34, v{r}")
        rl = list(rlist)
        if len(rl) == 1: A(f"v_mov_b32 v{tmp}, v{rl[0]}"); rl = []
        elif len(rl) == 2: A(f"v_or_b32 v{tmp}, v{rl[0]}, v{rl[1]}"); rl = []
        else: A(f"v_or3_b32 v{tmp}, v{rl[0]}, v{rl[1]}, v{rl[2]}"); rl = rl[3:]
        while len(rl) >= 2:
            A(f"v_or3_b32 v{tmp}, v{tmp}, v{rl[0]}, v{rl[1]}"); rl = rl[2:]
        if rl: A(f"v_or_b32 v{tmp}, v{tmp}, v{rl[0]}")
        if pair:
            A("s_nop 1")
            A(f"v_or_b32_dpp v{tmp}, v{tmp}, v{tmp} quad_perm:[1,0,3,2] {DPP}")
        A(f"v_and_b32 v{tmp}, v8, v{tmp}")
        A(f"v_cmp_ne_u32 vcc, 0, v{tmp}")

    seq = [("K", t) for t in range(24)] + [("V", t) for t in range(24)]
    for pos in range(D, 24 + D):
        if pos == gq_at:
            A("s_cmp_lg_u32 s32, 7"); A("s_cbranch_scc1 L_noqg")
            A("v_min_u32 v52, 47, v1")
            A("v_lshrrev_b32 v53, 4, v52")
            A("v_and_b32 v52, 15, v52")
            A("v_lshlrev_b32 v52, 4, v52")
            A("v_lshl_add_u32 v60, v53, 11, v52")
            qgather()
            g.lab("L_noqg")
        if pos == 24: g.stamp(2)
        g.wait(seq[pos - D]); kv_load(*seq[pos])
        if pos == gq_at + D - 1:
            A("s_cmp_lg_u32 s32, 7"); A("s_cbranch_scc1 L_noq")
            g.lab("L_q_chk")
            tagcheck(range(GR, GR + 32), 52)
            retry("q", qgather)
            for st in (16, 8, 4):
                for r in range(st): A(f"v_add_f32 v{GR+r}, v{GR+r}, v{GR+st+r}")
            A(f"v_cvt_pk_bf16_f32 v52, v{GR}, v{GR+1}")
            A(f"v_cvt_pk_bf16_f32 v53, v{GR+2}, v{GR+3}")
            A("v_min_u32 v54, 47, v1")
            A("v_lshlrev_b32 v54, 3, v54")
            A(f"ds_write_b64 v54, v[52:53] offset:{LDS_Q}")
            A("v_mov_b32 v54, 0"); A("v_mov_b32 v55, 1")
            A(f"ds_write_b32 v54, v55 offset:{LDS_FLAG}")
            g.lab("L_noq")
    g.stamp(3)

    def red8(regs):
        for mode in ("quad_perm:[1,0,3,2]", "quad_perm:[2,3,0,1]", "row_half_mirror"):
            if len(regs) < 3: A(f"s_nop {2 - len(regs)}")
            for r in regs: A(f"v_add_f32_dpp v{r}, v{r}, v{r} {mode} {DPP}")

    def bf16r(dst, src):
        A(f"v_cvt_pk_bf16_f32 v{dst}, v{src}, v{src}")
        A(f"v_and_b32 v{dst}, 0xffff0000, v{dst}")

    def red64(r, op):
        for mode in ("quad_perm:[1,0,3,2]", "quad_perm:[2,3,0,1]", "row_half_mirror", "row_mirror"):
            A("s_nop 1"); A(f"{op}_dpp v{r}, v{r}, v{r} {mode} {DPP}")
        A("s_nop 1"); A(f"{op}_dpp v{r}, v{r}, v{r} row_bcast:15 row_mask:0xa bank_mask:0xf")
        A("s_nop 1"); A(f"{op}_dpp v{r}, v{r}, v{r} row_bcast:31 row_mask:0xc bank_mask:0xf")

    A("v_lshlrev_b32 v52, 4, v3")
    A("v_mov_b32 v53, 0")
    for gg in range(8): A(f"v_mov_b32 v{32+gg}, 0")
    for r in range(12): A(f"v_mov_b32 v{40+r}, 0")
    g.lab("L_qwait")
    A(f"ds_read_b32 v54, v53 offset:{LDS_FLAG}")
    for s in range(3): A(f"ds_read_b128 v[{20+4*s}:{23+4*s}], v52 offset:{LDS_Q + 128*s}")
    A("s_waitcnt lgkmcnt(0)")
    A("v_cmp_eq_u32 vcc, 0, v54")
    A("s_cmp_eq_u64 vcc, 0")
    A("s_cbranch_scc1 L_qready")
    A("s_sleep 2")
    A("s_branch L_qwait")
    g.lab("L_qready")
    g.stamp(4)
    nextV = D
    xs = [12 * (i + 1) // (X + 1) for i in range(X)] if X else []
    for sr in range(12):
        s, r = divmod(sr, 4)
        for _ in range(xs.count(sr)):
            g.wait(("V", nextV - D)); kv_load("V", nextV); nextV += 1
        for gg in range(8):
            A(f"v_dot2c_f32_bf16 v{32+gg}, v{KB + (3*gg+s)*4 + r}, v{20+4*s+r}")
    red8(list(range(32, 40)))
    for p in range(4): A(f"v_cvt_pk_bf16_f32 v{52+p}, v{32+2*p}, v{33+2*p}")
    for p in range(4):
        A(f"v_lshlrev_b32 v{32+2*p}, 16, v{52+p}"); A(f"v_and_b32 v{33+2*p}, 0xffff0000, v{52+p}")
    for gg in range(8): A(f"v_mul_f32 v{32+gg}, s49, v{32+gg}")
    for p in range(4): A(f"v_cvt_pk_bf16_f32 v{52+p}, v{32+2*p}, v{33+2*p}")
    for p in range(4):
        A(f"v_lshlrev_b32 v{32+2*p}, 16, v{52+p}"); A(f"v_and_b32 v{33+2*p}, 0xffff0000, v{52+p}")
    A("v_max3_f32 v52, v32, v33, v34"); A("v_max3_f32 v53, v35, v36, v37")
    A("v_max3_f32 v52, v52, v38, v39"); A("v_max_f32 v52, v52, v53")
    def red8groups(r, op):
        A("s_nop 1"); A(f"{op}_dpp v{r}, v{r}, v{r} row_ror:8 {DPP}")
        A("s_nop 1"); A(f"{op}_dpp v{r}, v{r}, v{r} row_bcast:15 row_mask:0xa bank_mask:0xf")
        A("s_nop 1"); A(f"{op}_dpp v{r}, v{r}, v{r} row_bcast:31 row_mask:0xc bank_mask:0xf")
    red8groups(52, "v_max_f32")
    A("v_mul_f32 v52, s50, v52")
    g.wait(("V", nextV - D)); kv_load("V", nextV); nextV += 1
    A("v_readlane_b32 s36, v52, 63")
    A("s_nop 1")
    A("v_mov_b32 v56, s36")
    for gg in range(8): A(f"v_fma_f32 v{32+gg}, v{32+gg}, s50, -v56")
    for gg in range(8): A(f"v_exp_f32 v{32+gg}, v{32+gg}")
    A("v_add_f32 v52, v32, v33"); A("v_add_f32 v53, v34, v35"); A("v_add_f32 v54, v36, v37")
    A("v_add_f32 v57, v38, v39")
    A("v_add_f32 v52, v52, v53"); A("v_add_f32 v57, v57, v54"); A("v_add_f32 v57, v57, v52")
    for gg in range(8): A(f"v_cvt_pk_bf16_f32 v{32+gg}, v{32+gg}, v{32+gg}")
    red8groups(57, "v_add_f32")
    A("v_mov_b32 v58, s33"); A("v_mov_b32 v59, s33")
    A("s_lshl_b32 s36, s30, 10"); A(f"s_add_u32 s36, s36, {HDR_OFF}")
    A("s_add_u32 s42, s28, s36"); A("s_addc_u32 s43, s29, 0")
    A("s_lshl_b32 s36, s31, 3"); A("s_add_u32 s36, s36, s32"); A("s_lshl_b32 s36, s36, 4")
    A("v_mov_b32 v52, s36")
    A("s_mov_b32 exec_lo, 0"); A("s_mov_b32 exec_hi, 0x80000000")
    g.vmem("global_store_dwordx4 v52, v[56:59], s[42:43] sc1", "hdrst")
    A("s_mov_b64 exec, -1")
    g.stamp(5)
    g.wait(("V", nextV - D)); kv_load("V", nextV); nextV += 1
    A("s_mul_i32 s36, s30, 192"); A("s_mul_i32 s37, s31, 24"); A("s_add_u32 s36, s36, s37"); A("s_mul_i32 s36, s36, 1280")
    A("s_add_u32 s12, s12, s36"); A("s_addc_u32 s13, s13, 0")
    A("s_mul_i32 s36, s39, 48"); A("s_mul_i32 s37, s31, 6"); A("s_add_u32 s36, s36, s37"); A("s_mul_i32 s36, s36, 1280")
    A("s_add_u32 s20, s20, s36"); A("s_addc_u32 s21, s21, 0")
    A("s_lshl_b32 s36, s32, 8")
    A("v_lshl_add_u32 v53, v3, 4, s36")
    A("v_mul_u32_u24 v20, 3840, v2")
    A("v_add_u32 v20, v20, v53")
    A("v_min_u32 v54, 5, v2")
    A("v_mul_u32_u24 v21, 1280, v54")
    A("v_add_u32 v21, v21, v53")
    A("v_lshlrev_b32 v22, 4, v1")
    A(f"s_mul_i32 s36, s32, {OSTR}")
    A("v_add_u32 v23, s36, v22")
    A("s_mul_i32 s36, s32, 6")
    A("v_add_u32 v54, s36, v54")
    A("v_lshrrev_b32 v55, 4, v54"); A("v_lshlrev_b32 v24, 10, v55")
    A("v_bfe_u32 v55, v54, 1, 3"); A("v_lshl_add_u32 v24, v55, 4, v24")
    A("v_and_b32 v55, 1, v54"); A("v_lshl_add_u32 v24, v55, 8, v24")
    A(f"v_mul_u32_u24 v55, {OSTR}, v3")
    A("v_add_u32 v24, v24, v55")
    A("s_mul_i32 s36, s30, 6144"); A(f"s_add_u32 s36, s36, {OP_OFF}")
    A("s_add_u32 s40, s28, s36"); A("s_addc_u32 s41, s29, 0")
    A("s_mul_i32 s36, s32, 768"); A("s_mul_i32 s37, s31, 96"); A("s_add_u32 s36, s36, s37")
    A("v_lshl_add_u32 v25, v2, 4, s36")
    A("s_mul_i32 s36, s31, 768")
    A("v_mul_u32_u24 v26, 96, v3")
    A("v_mul_u32_u24 v55, 12, v2")
    A("v_add3_u32 v26, v26, v55, s36")
    A("v_lshlrev_b32 v27, 2, v3")
    A("v_lshlrev_b32 v28, 2, v2")
    A("v_mov_b32 v29, 0")

    wl = [("D", 0), ("D", 1)] + [(t, u) for t in range(3) for u in range(2)]
    def w_load(i):
        t, u = wl[i]
        if t == "D": g.vmem(f"global_load_dwordx4 {kreg(i)}, v21, s[20:21] offset:{u*128} nt", ("W", i))
        else: g.vmem(f"global_load_dwordx4 {kreg(i)}, v20, s[12:13] offset:{t*1280+u*128} nt", ("W", i))

    state = dict(nextV=nextV, nextW=0)
    def pv_step(idx, cls, st):
        gg, s = divmod(idx, 3)
        a = 12 + 4 * (gg & 1)
        if s == 0:
            for r in range(4): A(f"v_and_b32 v{a+r}, v{32+gg}, v{4+r}")
        g.wait(("V", idx))
        issued = False
        if st["nextV"] < 24:
            if st["nextV"] <= idx + D:
                kv_load("V", st["nextV"]); st["nextV"] += 1; issued = True
        elif cls == "A":
            for _ in range(wrate):
                if st["nextW"] < 8:
                    w_load(st["nextW"]); st["nextW"] += 1; issued = True
        if s == 0 and not issued: A("s_nop 0")
        A(f"v_mfma_f32_16x16x32_bf16 v[{40+4*s}:{43+4*s}], v[{a}:{a+3}], {vreg(idx)}, v[{40+4*s}:{43+4*s}]")

    idx = 0
    while state["nextV"] < 24:
        pv_step(idx, "C", state); idx += 1
    g.stamp(6)
    A("s_cmp_lt_u32 s32, 5"); A("s_cbranch_scc0 L_tailB")
    vm_save = list(g.vm)

    def owrite():
        for s in range(3): A(f"ds_write_b128 v23, v[{40+4*s}:{43+4*s}] offset:{LDS_O + 1024*s}")
    def oreduce(cls):
        A("s_waitcnt lgkmcnt(0)")
        A("s_barrier")
        A(f"ds_read_b128 v[40:43], v24 offset:{LDS_O}")
        A(f"ds_read_b128 v[44:47], v24 offset:{LDS_O + 640}")
        A(f"ds_read_b32 v48, v27 offset:{LDS_F}")
        if cls == "A":
            A(f"ds_read_b32 v61, v28 offset:{LDS_HID}")
            A(f"ds_read_b64 v[62:63], v29 offset:{LDS_G}")
            A("s_waitcnt lgkmcnt(0)" if diag else "s_waitcnt lgkmcnt(2)")
        else:
            A("s_waitcnt lgkmcnt(0)")
        for r in range(4): A(f"v_add_f32 v{40+r}, v{40+r}, v{44+r}")
        for r in range(4): A(f"v_mul_f32 v{40+r}, v{40+r}, v48")
        red8([40, 41, 42, 43])
        for r in range(4): A(f"v_bfi_b32 v{40+r}, v8, s34, v{40+r}")
        A("s_mov_b32 exec_lo, 0x01010101"); A("s_mov_b32 exec_hi, 0x00000101")
        g.vmem("global_store_dwordx4 v25, v[40:43], s[40:41] sc1", "opst")
        A("s_mov_b64 exec, -1")

    def pv_rest(cls):
        st = dict(state)
        for i in range(idx, 24):
            pv_step(i, cls, st)
        if cls == "A":
            while st["nextW"] < 8:
                w_load(st["nextW"]); st["nextW"] += 1

    A("v_lshrrev_b32 v52, 4, v1")
    A("v_lshlrev_b32 v52, 2, v52")
    A("v_bfe_u32 v53, v1, 1, 2")
    A("v_add_u32 v52, v52, v53")
    A("s_lshl_b32 s36, s32, 4")
    A("v_add_u32 v52, s36, v52")
    A("v_lshlrev_b32 v52, 13, v52")
    A("v_and_b32 v53, 1, v1")
    A("v_lshl_add_u32 v52, v53, 4, v52")
    A("s_lshl_b32 s36, s2, 5"); A(f"s_add_u32 s36, s36, {FP_OFF}")
    A("v_add_u32 v60, s36, v52")
    pv_rest("A")
    g.stamp(7)
    A("s_nop 6")
    owrite()
    oreduce("A")
    g.stamp(8)
    def ogather(): A("global_load_dwordx3 v[32:34], v26, s[40:41] sc1")
    ogather(); g.vm.append("og")
    A("s_waitcnt lgkmcnt(0)")
    for r in range(4): A(f"v_and_b32 v{12+r}, v61, v{4+r}")
    g.wait(("W", 1))
    A("s_nop 0")
    A(f"v_mfma_f32_16x16x32_bf16 v[44:47], v[12:15], {kreg(0)}, 0")
    A(f"v_mfma_f32_16x16x32_bf16 v[48:51], v[12:15], {kreg(1)}, 0")
    A("s_nop 7")
    for r in range(4): A(f"v_permlane32_swap_b32 v{44+r}, v{48+r}")
    for r in range(4): A(f"v_add_f32_dpp v{44+r}, v{48+r}, v{44+r} row_ror:8 {DPP}")
    for r in range(4): A(f"v_mul_f32 v{56+r}, v63, v{44+r}")
    A("s_waitcnt vmcnt(0)")
    g.lab("L_o_chk")
    tagcheck([32, 33, 34], 52)
    retry("o", ogather)
    g.stamp(9)
    red8([32, 33, 34])
    for t in range(3): A(f"v_cvt_pk_bf16_f32 v{32+t}, v{32+t}, v{32+t}")
    areg = [12, 16, 36]
    for t in range(3):
        for r in range(4): A(f"v_and_b32 v{areg[t]+r}, v{32+t}, v{4+r}")
    for t in range(3):
        for u in range(2):
            c = "0" if t == 0 else f"v[{44+4*u}:{47+4*u}]"
            A(f"v_mfma_f32_16x16x32_bf16 v[{44+4*u}:{47+4*u}], v[{areg[t]}:{areg[t]+3}], {kreg(2+2*t+u)}, {c}")
    A("s_nop 7")
    for r in range(4): A(f"v_permlane32_swap_b32 v{44+r}, v{48+r}")
    for r in range(4): A(f"v_add_f32_dpp v{44+r}, v{48+r}, v{44+r} row_ror:8 {DPP}")
    for r in range(4): A(f"v_fma_f32 v{44+r}, v{44+r}, v62, v{56+r}")
    for r in range(4): A(f"v_bfi_b32 v{44+r}, v8, s34, v{44+r}")
    A("s_mov_b32 exec_lo, 0x00ff00ff"); A("s_mov_b32 exec_hi, 0x00ff00ff")
    A("global_store_dwordx4 v60, v[44:47], s[28:29] sc1")
    A("s_mov_b64 exec, -1")
    g.stamp(10)
    A("s_barrier")
    A("s_branch L_exit")

    g.lab("L_tailB")
    g.vm = vm_save
    SJ = KB
    def hdrgather(): A(f"global_load_dwordx4 v[{SJ}:{SJ+3}], v22, s[42:43] sc1")
    def hgather():
        A(f"global_load_dword v{SJ}, v60, s[44:45] sc1")
        A(f"global_load_dword v{SJ+1}, v60, s[44:45] offset:2048 sc1")
    A("s_cmp_eq_u32 s32, 7"); A("s_cbranch_scc1 L_sjG")
    A("v_min_u32 v52, 5, v2")
    A("s_mul_i32 s36, s31, 6")
    A("v_add_u32 v52, s36, v52")
    A("v_lshlrev_b32 v52, 2, v52")
    A("v_lshl_add_u32 v60, v3, 8, v52")
    A("v_add_u32 v60, 6144, v60")
    A("s_cmp_eq_u32 s32, 6"); A("s_cbranch_scc1 L_sjH")
    hdrgather()
    A("s_branch L_sjdone")
    g.lab("L_sjH")
    hgather()
    A("s_branch L_sjdone")
    g.lab("L_sjG")
    A("v_mul_u32_u24 v53, 20, v1")
    A(f"global_load_dwordx4 v[{SJ}:{SJ+3}], v53, s[4:5]" + NT)
    A(f"global_load_dword v{SJ+4}, v53, s[4:5] offset:16" + NT)
    A(f"global_load_dwordx4 v[{SJ+6}:{SJ+9}], v53, s[22:23]" + NT)
    A(f"global_load_dword v{SJ+10}, v53, s[22:23] offset:16" + NT)
    g.lab("L_sjdone")
    g.vm.append("sj")
    pv_rest("B")
    g.stamp(7)
    A("s_nop 6")
    owrite()
    A("s_waitcnt vmcnt(0)")
    A("s_cmp_eq_u32 s32, 7"); A("s_cbranch_scc1 L_jobG")
    A("s_cmp_eq_u32 s32, 6"); A("s_cbranch_scc1 L_h_chk")
    g.lab("L_hd_chk")
    A(f"v_xor_b32 v52, s33, v{SJ+2}"); A(f"v_xor_b32 v53, s33, v{SJ+3}")
    A("v_or_b32 v52, v52, v53")
    A("v_cmp_ne_u32 vcc, 0, v52")
    retry("hd", hdrgather)
    A(f"v_mov_b32 v52, v{SJ}")
    red64(52, "v_max_f32")
    A("s_nop 0")
    A("v_readlane_b32 s36, v52, 63")
    A("s_nop 1")
    A(f"v_subrev_f32 v52, s36, v{SJ}")
    A("v_exp_f32 v52, v52")
    A("s_nop 0")
    A(f"v_mul_f32 v53, v52, v{SJ+1}")
    red64(53, "v_add_f32")
    A("v_rcp_f32 v53, v53")
    A("s_nop 0")
    A("v_readlane_b32 s36, v53, 63")
    A("v_cmp_eq_u32 vcc, s31, v2")
    A("s_nop 0")
    A("v_mul_f32 v52, s36, v52")
    A("s_mov_b64 exec, vcc")
    A(f"ds_write_b32 v27, v52 offset:{LDS_F}")
    A("s_mov_b64 exec, -1")
    A("s_branch L_B2B")
    g.lab("L_h_chk")
    tagcheck([SJ, SJ + 1], 52)
    retry("h", hgather)
    red8([SJ, SJ + 1])
    bf16r(52, SJ); bf16r(53, SJ + 1)
    A("v_mul_f32 v54, v52, v52")
    A(f"v_mov_b32 v55, {f2u(0.044715):#x}")
    A("v_fma_f32 v54, v54, v55, 1.0")
    A("v_mul_f32 v54, v54, v52")
    A(f"v_mul_f32 v54, {f2u(-2 * 0.7978845608028654 * LOG2E):#x}, v54")
    A("v_exp_f32 v54, v54")
    A("s_nop 0")
    A("v_add_f32 v54, 1.0, v54")
    A("v_rcp_f32 v54, v54")
    A("s_nop 0")
    A("v_mul_f32 v54, v54, v52")
    bf16r(54, 54)
    A("v_mul_f32 v54, v54, v53")
    A("v_cmp_gt_u32 vcc, 6, v2")
    A("v_cvt_pk_bf16_f32 v54, v54, v54")
    A("s_nop 0")
    A("v_cndmask_b32 v54, 0, v54, vcc")
    A(f"ds_write_b32 v28, v54 offset:{LDS_HID}")
    A("s_branch L_B2B")
    g.lab("L_jobG")
    A("v_mov_b32 v56, 0")
    for i in range(5):
        xr = SJ + i; wr = SJ + 6 + i
        A(f"v_lshlrev_b32 v52, 16, v{xr}"); A(f"v_and_b32 v53, 0xffff0000, v{xr}")
        A(f"v_lshlrev_b32 v54, 16, v{wr}"); A(f"v_and_b32 v55, 0xffff0000, v{wr}")
        A("v_mul_f32 v52, v52, v54"); A("v_mul_f32 v53, v53, v55")
        A("v_cvt_pk_bf16_f32 v52, v52, v53")
        A("v_lshlrev_b32 v53, 16, v52"); A("v_and_b32 v52, 0xffff0000, v52")
        A("v_add_f32 v56, v56, v53"); A("v_add_f32 v56, v56, v52")
    red64(56, "v_add_f32")
    A("s_nop 0")
    A("v_readlane_b32 s36, v56, 63")
    A("s_nop 1")
    A("v_mov_b32 v56, s36")
    bf16r(56, 56)
    A(f"v_mul_f32 v56, {f2u(-LOG2E):#x}, v56")
    A("v_exp_f32 v56, v56")
    A("s_nop 0")
    A("v_add_f32 v56, 1.0, v56")
    A("v_rcp_f32 v56, v56")
    A("s_nop 0")
    bf16r(56, 56)
    A("v_sub_f32 v57, 1.0, v56")
    bf16r(57, 57)
    A(f"ds_write_b64 v29, v[56:57] offset:{LDS_G}")
    g.lab("L_B2B")
    g.stamp(9)
    oreduce("B")
    g.stamp(8)
    A("s_cmp_lt_u32 s32, 7"); A("s_cbranch_scc1 L_exit")
    A("s_cmp_ge_u32 s2, 80"); A("s_cbranch_scc1 L_exit")
    A("s_lshl_b32 s36, s2, 13"); A(f"s_add_u32 s36, s36, {FP_OFF}")
    A("s_add_u32 s40, s28, s36"); A("s_addc_u32 s41, s29, 0")
    A("v_add_u32 v23, 4096, v22")
    A("s_lshr_b32 s36, s2, 4"); A("s_lshl_b32 s36, s36, 7")
    A("s_bfe_u32 s37, s2, 0x10003"); A("s_lshl_b32 s37, s37, 6"); A("s_add_u32 s36, s36, s37")
    A("s_and_b32 s37, s2, 3"); A("s_lshl_b32 s37, s37, 4"); A("s_add_u32 s36, s36, s37")
    A("s_bfe_u32 s37, s2, 0x10002"); A("s_lshl_b32 s37, s37, 2"); A("s_add_u32 s36, s36, s37")
    A("v_and_b32 v52, 1, v1"); A("v_lshlrev_b32 v52, 3, v52")
    A("v_lshrrev_b32 v53, 4, v1")
    A("v_add3_u32 v60, v52, v53, s36")
    A("v_lshlrev_b32 v60, 1, v60")
    A("s_barrier")
    def fgather():
        for k in range(8): A(f"global_load_dwordx4 {kreg(k)}, v23, s[40:41] offset:{k*1024-4096} sc1")
    fgather()
    A("s_waitcnt vmcnt(0)")
    g.lab("L_f_chk")
    tagcheck(range(KB, KB + 32), 52, pair=True)
    retry("f", fgather, masked=True)
    g.stamp(10)
    for st in (16, 8, 4):
        for r in range(st): A(f"v_add_f32 v{KB+r}, v{KB+r}, v{KB+st+r}")
    A("s_nop 0")
    A(f"v_permlane32_swap_b32 v{KB}, v{KB+2}")
    A(f"v_permlane32_swap_b32 v{KB+1}, v{KB+3}")
    A(f"v_add_f32 v{KB}, v{KB}, v{KB+2}")
    A(f"v_add_f32 v{KB+1}, v{KB+1}, v{KB+3}")
    A("s_nop 1")
    A(f"v_permlane16_swap_b32 v{KB}, v{KB+1}")
    A(f"v_add_f32 v{KB}, v{KB}, v{KB+1}")
    for mode in ("row_ror:8", "row_ror:4", "row_ror:2"):
        A("s_nop 1"); A(f"v_add_f32_dpp v{KB}, v{KB}, v{KB} {mode} {DPP}")
    A(f"v_cvt_pk_bf16_f32 v{KB}, v{KB}, v{KB}")
    A("s_mov_b32 exec_lo, 0x00030003"); A("s_mov_b32 exec_hi, 0x00030003")
    A(f"global_store_short v60, v{KB}, s[24:25]")
    A("s_cmp_lg_u32 s2, 0"); A("s_cbranch_scc1 L_exit")
    A("s_mov_b64 exec, 1")
    A("v_mov_b32 v52, 0"); A("v_mov_b32 v53, s33")
    A("global_store_dword v52, v53, s[28:29]")
    g.lab("L_exit")
    if dbgsum:
        g.stamp(11)
        A("s_mov_b64 exec, 1")
        A("s_waitcnt lgkmcnt(0)")
        A("s_cmp_eq_u32 s32, 0"); A("s_cbranch_scc1 L_dbg0")
        A("s_cmp_eq_u32 s32, 7"); A("s_cbranch_scc0 L_end")
        A("v_mov_b32 v52, 0"); A("v_mov_b32 v53, s86")
        A("global_atomic_umax v52, v53, s[26:27] offset:60 sc1")
        A("s_branch L_end")
        g.lab("L_dbg0")
        A("v_mov_b32 v52, 0")
        A("s_not_b32 s36, s64"); A("v_mov_b32 v53, s36")
        A("global_atomic_umax v52, v53, s[26:27] sc1")
        for k in range(11):
            A(f"v_mov_b32 v53, s{64+2*k}")
            A(f"global_atomic_umax v52, v53, s[26:27] offset:{4+4*k} sc1")
        for j, k in enumerate((1, 7, 10)):
            A(f"s_not_b32 s36, s{64+2*k}"); A("v_mov_b32 v53, s36")
            A(f"global_atomic_umax v52, v53, s[26:27] offset:{48+4*j} sc1")
    elif diag:
        g.stamp(11)
        A("s_mov_b64 exec, 1")
        A("s_lshl_b32 s36, s2, 3"); A("s_add_u32 s36, s36, s32"); A("s_lshl_b32 s36, s36, 7")
        A(f"s_add_u32 s36, s36, {STAMP_OFF}")
        A("v_mov_b32 v52, s36")
        A("s_getreg_b32 s37, hwreg(HW_REG_XCC_ID)")
        A("s_waitcnt lgkmcnt(0)")
        A("s_mov_b32 s88, s46"); A("s_mov_b32 s89, s37")
        for k in range(8):
            for r in range(4): A(f"v_mov_b32 v{KB+4*k+r}, s{64+4*k+r}")
            A(f"global_store_dwordx4 v52, {kreg(k)}, s[28:29] offset:{16*k}")
    g.lab("L_end")
    A("s_endpgm")
    L.append('.section .rodata,"a"'); L.append(".p2align 6"); L.append(f".amdhsa_kernel {KN}")
    L.append("  .amdhsa_next_free_vgpr 256")
    L.append("  .amdhsa_next_free_sgpr 96")
    L.append("  .amdhsa_accum_offset 256")
    L.append("  .amdhsa_group_segment_fixed_size 0"); L.append("  .amdhsa_kernarg_size 104")
    L.append("  .amdhsa_user_sgpr_count 2"); L.append("  .amdhsa_user_sgpr_kernarg_segment_ptr 1")
    L.append("  .amdhsa_system_sgpr_workgroup_id_x 1")
    L.append("  .amdhsa_float_denorm_mode_32 3")
    L.append(".end_amdhsa_kernel")
    return "\n".join(L) + "\n"

if __name__ == "__main__":
    import argparse, hazard, ast
    ap = argparse.ArgumentParser()
    ap.add_argument("-o", default="gated_mix__sliding_block_cached__geglu_ffn__decode.s")
    ap.add_argument("kv", nargs="*")
    a = ap.parse_args()
    kw = {}
    for x in a.kv:
        k, v = x.split("="); kw[k] = ast.literal_eval(v)
    t = gen(**kw)
    open(a.o, "w").write(t)
    pr = hazard.check(t)
    for x in pr: print(x)
    print(len(pr), "hazard findings")
```

```python
import sys, struct
KN = "gated_mix__sliding_block_cached__geglu_ffn__decode_kernel"

QP_OFF = 4096
CNT_OFF = QP_OFF + 32 * 10240
OP_OFF = CNT_OFF + 32 * 1024
FP_OFF = OP_OFF + 32 * 8192
STAMP_OFF = 1 << 22

LDS_Q = 0
LDS_G = 384
LDS_FLAG = 392
LDS_HID = 400
LDS_ML = 448
LDS_O = 512
OSTR = 3072 + 16
LDS_BYTES = LDS_O + 8 * OSTR

def f2u(f): return struct.unpack("<I", struct.pack("<f", f))[0]
LOG2E = 1.4426950408889634

HEADER = open("gated_mix__sliding_block_cached__geglu_ffn__decode.s.ref").read().split("; Override")[0]

class G:
    def __init__(s, diag=False):
        s.L = []; s.vm = []; s.diag = diag
    def A(s, x): s.L.append("    " + x)
    def lab(s, x): s.L.append(x + ":")
    def c(s, x): s.L.append("    ; " + x)
    def vmem(s, x, tag=None):
        s.A(x); s.vm.append(tag)
    def wait(s, tag):
        idx = max(i for i, t in enumerate(s.vm) if t == tag)
        n = len(s.vm) - 1 - idx
        s.A(f"s_waitcnt vmcnt({n})")
    def stamp(s, i):
        if s.diag: s.A(f"s_memrealtime s[{64+2*i}:{65+2*i}]")

def q4(b): return f"v[{b}:{b+3}]"
DPP = "row_mask:0xf bank_mask:0xf"

def gen(S=5, D=4, X=2, diag=False, spin=200000, prefetch_code=True, gq_at=18, qpos=24, w1=3, layout="inter", dbgsum=False, wmode="pv", pretouch=False, pubbar=False, wsbase=0):
    g = G(diag); A = g.A
    L = g.L
    NS = 3 * S
    KB = 64; VB = KB + 4 * NS; KD = VB + 4 * NS; VD = KD + 12; WB = VD + 12
    assert WB + 32 <= 240
    NDYN = 512 - 64 * (S + 1)
    vM, vL, vG, vCnt = 60, 61, 62, 63
    vWo, vWd, vL16, vOw, vOPst, vMLr, vK4, vZero, vOne, vHid, vG2, vFP, vGat = 240, 241, 242, 243, 245, 247, 248, 249, 250, 251, 252, 254, 255
    vOr = (244, 246, 11)
    IS = 64 * 3072 if layout == "inter" else 3072
    L.append(HEADER.rstrip())
    L.append(f"; @launch grid=(256,1,1) block=(512,1,1) lds={LDS_BYTES}")
    L.append('.amdgcn_target "amdgcn-amd-amdhsa--gfx950"')
    L.append(".text"); L.append(f".globl {KN}"); L.append(".p2align 8"); L.append(f".type {KN},@function")
    g.lab(KN)
    A("s_cmp_ge_u32 s2, 256"); A("s_cbranch_scc1 L_end")
    A("s_load_dwordx16 s[4:19], s[0:1], 0")
    A("s_load_dwordx8 s[20:27], s[0:1], 64")
    A("s_load_dwordx2 s[28:29], s[0:1], 96")
    g.stamp(0)
    A("v_lshrrev_b32 v52, 6, v0")
    A("v_and_b32 v1, 63, v0")
    A("v_readfirstlane_b32 s32, v52")
    A("v_lshrrev_b32 v2, 3, v1")
    A("v_and_b32 v3, 7, v1")
    A(f"v_mov_b32 v{vZero}, 0")
    A(f"v_mov_b32 v{vGat}, 0")
    A("s_lshr_b32 s30, s2, 3")
    A("s_and_b32 s31, s2, 7")
    A(f"ds_write_b32 v{vZero}, v{vZero} offset:{LDS_FLAG}")
    A("v_mul_u32_u24 v10, 384, v2")
    A("v_lshl_add_u32 v10, v3, 4, v10")
    A("s_lshl_b32 s36, s31, 3"); A("s_add_u32 s36, s36, s32")
    A(f"s_mul_i32 s36, s36, {3072 if layout == 'inter' else 3072 * (S + 1)}")
    A("v_add_u32 v9, s36, v10")
    A("s_mul_i32 s35, s30, 12582912")
    A(f"s_add_u32 s35, s35, {28672*384}")
    A("s_lshl_b32 s36, s30, 10"); A(f"s_add_u32 s36, s36, {CNT_OFF}")
    A(f"v_mov_b32 v{vCnt}, s36")
    A("s_cmp_lt_u32 s32, 5")
    A("s_waitcnt lgkmcnt(0)")
    A("s_barrier")
    if wsbase:
        A(f"s_add_u32 s28, s28, {wsbase}"); A("s_addc_u32 s29, s29, 0"); A("s_cmp_lt_u32 s32, 5")
    A("s_load_dword s33, s[28:29], 0")
    A("s_cbranch_scc0 L_proB")

    seq = [("K", t) for t in range(NS)] + [("V", t) for t in range(NS)] + [("Kd", t) for t in range(3)] + [("Vd", t) for t in range(3)]
    cur = [0]
    def grab():
        A("s_mov_b64 exec, 1")
        g.vmem(f"global_atomic_add v{vG}, v{vCnt}, v{vOne}, s[28:29] sc0 sc1", "grab")
        A("s_mov_b64 exec, -1")
    def issue(pos):
        kind, idx = seq[pos]
        if kind in ("K", "V"): item, s = divmod(idx, 3)
        else: item, s = S, idx
        off = item * IS + s * 128
        d = off - cur[0]
        if d > 4095 or d < -4096:
            A(f"v_add_u32 v9, {item * IS - cur[0]}, v9"); cur[0] = item * IS; d = s * 128
        if (kind, idx) == ("Kd", 0): grab()
        reg = {"K": KB, "V": VB, "Kd": KD, "Vd": VD}[kind] + 4 * idx
        base = "s[6:7]" if kind[0] == "K" else "s[8:9]"
        g.vmem(f"global_load_dwordx4 {q4(reg)}, v9, {base} offset:{d} nt", (kind, idx))

    def consts():
        A("v_and_b32 v52, 1, v1")
        A("v_mov_b32 v53, 0xffff")
        A("v_lshlrev_b32 v52, 4, v52")
        A("v_lshlrev_b32 v53, v52, v53")
        A("v_lshrrev_b32 v52, 1, v3")
        for r in range(4):
            A(f"v_cmp_eq_u32 vcc, {r}, v52")
            A("s_nop 1")
            A(f"v_cndmask_b32 v{4+r}, 0, v53, vcc")
        A("v_mov_b32 v8, 0xff")
        A(f"v_mov_b32 v{vOne}, 1")
        A(f"s_mov_b32 s49, {f2u(192 ** -0.5):#x}")
        A(f"s_mov_b32 s50, {f2u(LOG2E):#x}")
        A(f"s_mov_b32 s46, {spin}")
        A("s_mul_i32 s36, s30, 10240"); A(f"s_add_u32 s36, s36, {QP_OFF}")
        A("s_add_u32 s44, s28, s36"); A("s_addc_u32 s45, s29, 0")
        A("s_mul_i32 s36, s30, 192"); A("s_mul_i32 s37, s31, 24"); A("s_add_u32 s36, s36, s37"); A("s_mul_i32 s36, s36, 1280")
        A("s_add_u32 s12, s12, s36"); A("s_addc_u32 s13, s13, 0")
        A("s_mul_i32 s36, s30, 48"); A("s_mul_i32 s37, s31, 6"); A("s_add_u32 s36, s36, s37"); A("s_mul_i32 s36, s36, 1280")
        A("s_add_u32 s20, s20, s36"); A("s_addc_u32 s21, s21, 0")
        A("s_lshl_b32 s36, s32, 8")
        A("v_lshl_add_u32 v53, v3, 4, s36")
        A(f"v_mul_u32_u24 v{vWo}, 3840, v2")
        A(f"v_add_u32 v{vWo}, v{vWo}, v53")
        A("v_min_u32 v52, 5, v2")
        A(f"v_mul_u32_u24 v{vWd}, 1280, v52")
        A(f"v_add_u32 v{vWd}, v{vWd}, v53")
        A(f"v_lshlrev_b32 v{vL16}, 4, v1")
        A(f"s_mul_i32 s36, s32, {OSTR}")
        A(f"v_add_u32 v{vOw}, s36, v{vL16}")
        A("s_mul_i32 s36, s32, 24")
        A("v_mul_u32_u24 v52, 3, v2")
        A(f"v_mul_u32_u24 v54, {OSTR}, v3")
        for t, reg in enumerate(vOr):
            A(f"v_add3_u32 v55, v52, s36, {t}")
            A("v_lshrrev_b32 v53, 6, v55"); A(f"v_lshl_add_u32 v{reg}, v53, 10, v54")
            A("v_bfe_u32 v53, v55, 3, 3"); A(f"v_lshl_add_u32 v{reg}, v53, 4, v{reg}")
            A("v_bfe_u32 v53, v55, 2, 1"); A(f"v_lshl_add_u32 v{reg}, v53, 8, v{reg}")
            A("v_and_b32 v53, 3, v55"); A(f"v_lshl_add_u32 v{reg}, v53, 2, v{reg}")
            A(f"v_add_u32 v{reg}, {LDS_O}, v{reg}")
        A("s_lshl_b32 s36, s30, 13"); A(f"s_add_u32 s36, s36, {OP_OFF}")
        A("s_add_u32 s42, s28, s36"); A("s_addc_u32 s43, s29, 0")
        A("s_lshl_b32 s36, s32, 10"); A("s_lshl_b32 s37, s31, 4"); A("s_add_u32 s36, s36, s37")
        A(f"v_lshl_add_u32 v{vOPst}, v2, 7, s36")
        A(f"v_lshlrev_b32 v{vMLr}, 3, v3")
        A(f"v_lshlrev_b32 v{vK4}, 2, v2")

    g.c("waves 0-4: partial projections of x rows [80c, 80c+80)")
    A("s_or_b32 s36, s31, s32"); A("s_cmp_lg_u32 s36, 0"); A("s_cbranch_scc1 L_noinit")
    A("s_mov_b64 exec, 1")
    A(f"global_store_dword v{vCnt}, v{vZero}, s[28:29] sc1")
    A("s_mov_b64 exec, -1")
    g.lab("L_noinit")
    A("s_mul_i32 s36, s30, 384"); A("s_lshl_b32 s37, s32, 7"); A("s_add_u32 s36, s36, s37")
    A("s_mul_i32 s37, s30, 96")
    A("s_cmp_eq_u32 s32, 3")
    A("s_cselect_b32 s40, s16, s18"); A("s_cselect_b32 s41, s17, s19")
    A("s_cmp_lt_u32 s32, 3")
    A("s_cselect_b32 s40, s10, s40"); A("s_cselect_b32 s41, s11, s41")
    A("s_cselect_b32 s36, s36, s37")
    A("s_movk_i32 s38, 3072")
    A("s_cselect_b32 s38, 12288, s38")
    A("s_cselect_b32 s37, 7, 5")
    A("s_add_u32 s40, s40, s36"); A("s_addc_u32 s41, s41, 0")
    A("s_mul_i32 s36, s31, 80")
    A("v_mul_u32_u24 v52, 10, v2")
    A("v_add_u32 v52, s36, v52")
    A("v_lshlrev_b32 v53, 1, v52")
    g.vmem("global_load_dwordx4 v[20:23], v53, s[4:5] nt", "x0")
    g.vmem("global_load_dword v24, v53, s[4:5] offset:16 nt", "x1")
    A("v_mul_u32_u24 v52, s38, v52")
    A("v_min_u32 v53, s37, v3")
    A("v_lshl_add_u32 v52, v53, 4, v52")
    for t in range(10):
        g.vmem(f"global_load_dwordx4 {q4(VB+4*t)}, v52, s[40:41] nt", ("P", t))
        if t < 9: A("v_add_u32 v52, s38, v52")
    A("s_add_u32 s6, s6, s35"); A("s_addc_u32 s7, s7, 0")
    A("s_add_u32 s8, s8, s35"); A("s_addc_u32 s9, s9, 0")
    consts()
    A("v_lshrrev_b32 v52, 4, v1")
    A("v_lshlrev_b32 v52, 2, v52")
    A("v_bfe_u32 v53, v1, 1, 2")
    A("v_add_u32 v52, v52, v53")
    A("s_lshl_b32 s36, s32, 4")
    A("v_add_u32 v52, s36, v52")
    A("v_lshlrev_b32 v52, 13, v52")
    A("v_and_b32 v53, 1, v1")
    A("v_lshl_add_u32 v52, v53, 4, v52")
    A("s_lshl_b32 s36, s2, 5"); A(f"s_add_u32 s36, s36, {FP_OFF}")
    A(f"v_add_u32 v{vFP}, s36, v52")
    A("s_lshl_b32 s36, s31, 10")
    A(f"v_add_u32 v{vGat}, s36, v{vL16}")
    A("s_mov_b32 s47, 0x01000100"); A("s_mov_b32 s48, 0x03020302")
    for r in range(4): A(f"v_mov_b32 v{40+r}, 0")
    A("s_lshl_b32 s36, s32, 11")
    A("s_lshl_b32 s37, s31, 8"); A("s_add_u32 s36, s36, s37")
    A("v_lshlrev_b32 v54, 5, v3")
    A("v_bfe_u32 v53, v1, 4, 1")
    A("v_lshl_add_u32 v54, v53, 4, v54")
    A("v_lshrrev_b32 v53, 5, v1")
    A("v_lshl_add_u32 v54, v53, 3, v54")
    A("v_add_u32 v54, s36, v54")
    for t in range(10):
        g.wait(("P", t))
        if t >= 10 - D: issue(t - (10 - D))
        a = 12 + 4 * (t & 1)
        A(f"v_perm_b32 v52, v{20 + t//2}, v{20 + t//2}, s{47 + (t & 1)}")
        for r in range(4): A(f"v_and_b32 v{a+r}, v52, v{4+r}")
        A("s_nop 1")
        A(f"v_mfma_f32_16x16x32_bf16 v[40:43], {q4(a)}, {q4(VB+4*t)}, v[40:43]")
    A("s_waitcnt lgkmcnt(0)")
    A("s_add_u32 s33, s33, 1"); A("s_and_b32 s34, s33, 0xff")
    A("s_nop 4")
    A("v_permlane32_swap_b32 v40, v42")
    A("v_permlane32_swap_b32 v41, v43")
    A("s_nop 1")
    A(f"v_add_f32_dpp v40, v42, v40 row_ror:8 {DPP}")
    A(f"v_add_f32_dpp v41, v43, v41 row_ror:8 {DPP}")
    A("v_bfi_b32 v40, v8, s34, v40")
    A("v_bfi_b32 v41, v8, s34, v41")
    A("s_mov_b32 exec_lo, 0x00ff00ff"); A("s_mov_b32 exec_hi, 0x00ff00ff")
    A("global_store_dwordx2 v54, v[40:41], s[44:45] sc1")
    A("s_mov_b64 exec, -1")
    g.stamp(1)
    A("s_branch L_join1")
    cur_join = cur[0]

    g.lab("L_proB")
    g.vm = []; cur[0] = 0
    A("s_add_u32 s6, s6, s35"); A("s_addc_u32 s7, s7, 0")
    A("s_add_u32 s8, s8, s35"); A("s_addc_u32 s9, s9, 0")
    for t in range(D): issue(t)
    assert cur[0] == cur_join
    if prefetch_code:
        A("s_cmp_eq_u32 s32, 5"); A("s_cbranch_scc0 L_nopf")
        A("s_getpc_b64 s[36:37]")
        g.lab("L_pc")
        A(f"s_sub_u32 s36, s36, L_pc-{KN}"); A("s_subb_u32 s37, s37, 0")
        A("v_lshlrev_b32 v53, 7, v1")
        A(f"v_min_u32 v53, L_end-{KN}, v53")
        A("global_load_dword v31, v53, s[36:37]")
        g.lab("L_nopf")
    consts()
    A(f"v_mov_b32 v{vFP}, 0")
    if pretouch:
        A("s_cmp_eq_u32 s32, 6"); A("s_cbranch_scc0 L_nopt6")
        A("s_lshl_b32 s36, s31, 10")
        A(f"v_add_u32 v53, s36, v{vL16}")
        A(f"global_load_dwordx4 {q4(WB)}, v53, s[42:43] sc1")
        g.lab("L_nopt6")
        A("s_cmp_eq_u32 s32, 7"); A("s_cbranch_scc0 L_nopt7")
        A("s_cmp_lt_u32 s2, 80"); A("s_cbranch_scc0 L_nopt7")
        A("s_lshl_b32 s36, s2, 13"); A(f"s_add_u32 s36, s36, {FP_OFF}")
        A("v_lshlrev_b32 v53, 7, v1")
        A("v_add_u32 v53, s36, v53")
        A(f"global_load_dword v{WB}, v53, s[28:29] sc1")
        g.lab("L_nopt7")
    A("s_waitcnt lgkmcnt(0)")
    A("s_add_u32 s33, s33, 1"); A("s_and_b32 s34, s33, 0xff")
    g.stamp(1)

    g.lab("L_join1")
    g.vm = [seq[i] for i in range(D)]
    GR = WB
    def qgather():
        for p in range(8): A(f"global_load_dwordx4 {q4(GR+4*p)}, v{vGat}, s[44:45] offset:{p*256} sc1")
    def hgather():
        A(f"global_load_dword v{GR}, v{vGat}, s[44:45] sc1")
        A(f"global_load_dword v{GR+1}, v{vGat}, s[44:45] offset:2048 sc1")

    def retry(name, reload_fn, masked=False):
        A("s_cmp_eq_u64 vcc, 0")
        A(f"s_cbranch_scc1 L_{name}_ok")
        A("s_sub_u32 s46, s46, 1"); A("s_cbranch_scc1 L_%s_ok" % name)
        if masked: A("s_mov_b64 exec, vcc")
        reload_fn()
        A("s_waitcnt vmcnt(0)")
        A(f"s_branch L_{name}_chk")
        g.lab(f"L_{name}_ok")
        if masked: A("s_mov_b64 exec, -1")

    def tagcheck(rlist, tmp, pair=False):
        for r in rlist: A(f"v_xor_b32 v{r}, s34, v{r}")
        rl = list(rlist)
        if len(rl) == 1: A(f"v_mov_b32 v{tmp}, v{rl[0]}"); rl = []
        elif len(rl) == 2: A(f"v_or_b32 v{tmp}, v{rl[0]}, v{rl[1]}"); rl = []
        else: A(f"v_or3_b32 v{tmp}, v{rl[0]}, v{rl[1]}, v{rl[2]}"); rl = rl[3:]
        while len(rl) >= 2:
            A(f"v_or3_b32 v{tmp}, v{tmp}, v{rl[0]}, v{rl[1]}"); rl = rl[2:]
        if rl: A(f"v_or_b32 v{tmp}, v{tmp}, v{rl[0]}")
        if pair:
            A("s_nop 1")
            A(f"v_or_b32_dpp v{tmp}, v{tmp}, v{tmp} quad_perm:[1,0,3,2] {DPP}")
        A(f"v_and_b32 v{tmp}, v8, v{tmp}")
        A(f"v_cmp_ne_u32 vcc, 0, v{tmp}")

    def red8(regs, op="v_add_f32"):
        for mode in ("quad_perm:[1,0,3,2]", "quad_perm:[2,3,0,1]", "row_half_mirror"):
            if len(regs) < 3: A(f"s_nop {2 - len(regs)}")
            for r in regs: A(f"{op}_dpp v{r}, v{r}, v{r} {mode} {DPP}")

    def bf16r(dst, src):
        A(f"v_cvt_pk_bf16_f32 v{dst}, v{src}, v{src}")
        A(f"v_and_b32 v{dst}, 0xffff0000, v{dst}")

    def red64(r, op):
        for mode in ("quad_perm:[1,0,3,2]", "quad_perm:[2,3,0,1]", "row_half_mirror", "row_mirror"):
            A("s_nop 1"); A(f"{op}_dpp v{r}, v{r}, v{r} {mode} {DPP}")
        A("s_nop 1"); A(f"{op}_dpp v{r}, v{r}, v{r} row_bcast:15 row_mask:0xa bank_mask:0xf")
        A("s_nop 1"); A(f"{op}_dpp v{r}, v{r}, v{r} row_bcast:31 row_mask:0xc bank_mask:0xf")

    def red8groups(r, op):
        A("s_nop 1"); A(f"{op}_dpp v{r}, v{r}, v{r} row_ror:8 {DPP}")
        A("s_nop 1"); A(f"{op}_dpp v{r}, v{r}, v{r} row_bcast:15 row_mask:0xa bank_mask:0xf")
        A("s_nop 1"); A(f"{op}_dpp v{r}, v{r}, v{r} row_bcast:31 row_mask:0xc bank_mask:0xf")

    def side_issue():
        A("s_cmp_lt_u32 s32, 5"); A("s_cbranch_scc1 L_sj_issued")
        A("s_cmp_eq_u32 s32, 5"); A("s_cbranch_scc1 L_sjG")
        A("s_cmp_eq_u32 s32, 6"); A("s_cbranch_scc1 L_sjH")
        A("v_min_u32 v52, 47, v1")
        A("v_lshrrev_b32 v53, 4, v52")
        A("v_and_b32 v52, 15, v52")
        A("v_lshlrev_b32 v52, 4, v52")
        A(f"v_lshl_add_u32 v{vGat}, v53, 11, v52")
        qgather()
        A("s_branch L_sj_issued")
        g.lab("L_sjH")
        A("v_min_u32 v52, 5, v2")
        A("s_mul_i32 s36, s31, 6")
        A("v_add_u32 v52, s36, v52")
        A("v_lshlrev_b32 v52, 2, v52")
        A(f"v_lshl_add_u32 v{vGat}, v3, 8, v52")
        A(f"v_add_u32 v{vGat}, 6144, v{vGat}")
        hgather()
        A("s_branch L_sj_issued")
        g.lab("L_sjG")
        A("v_mul_u32_u24 v53, 20, v1")
        A(f"global_load_dwordx4 {q4(GR)}, v53, s[4:5] nt")
        A(f"global_load_dword v{GR+4}, v53, s[4:5] offset:16 nt")
        A(f"global_load_dwordx4 {q4(GR+6)}, v53, s[22:23] nt")
        A(f"global_load_dword v{GR+10}, v53, s[22:23] offset:16 nt")
        g.lab("L_sj_issued")

    def side_process():
        A("s_cmp_lt_u32 s32, 5"); A("s_cbranch_scc1 L_sj_done")
        A("s_cmp_eq_u32 s32, 5"); A("s_cbranch_scc1 L_jobG")
        A("s_cmp_eq_u32 s32, 6"); A("s_cbranch_scc1 L_h_chk")
        g.lab("L_q_chk")
        tagcheck(range(GR, GR + 32), 52)
        retry("q", qgather)
        for st in (16, 8, 4):
            for r in range(st): A(f"v_add_f32 v{GR+r}, v{GR+r}, v{GR+st+r}")
        A(f"v_cvt_pk_bf16_f32 v52, v{GR}, v{GR+1}")
        A(f"v_cvt_pk_bf16_f32 v53, v{GR+2}, v{GR+3}")
        A("v_min_u32 v54, 47, v1")
        A("v_lshlrev_b32 v54, 3, v54")
        A(f"ds_write_b64 v54, v[52:53] offset:{LDS_Q}")
        A(f"ds_write_b32 v{vZero}, v{vOne} offset:{LDS_FLAG}")
        A("s_branch L_sj_done")
        g.lab("L_h_chk")
        tagcheck([GR, GR + 1], 52)
        retry("h", hgather)
        red8([GR, GR + 1])
        bf16r(52, GR); bf16r(53, GR + 1)
        A("v_mul_f32 v54, v52, v52")
        A(f"v_mov_b32 v55, {f2u(0.044715):#x}")
        A("v_fma_f32 v54, v54, v55, 1.0")
        A("v_mul_f32 v54, v54, v52")
        A(f"v_mul_f32 v54, {f2u(-2 * 0.7978845608028654 * LOG2E):#x}, v54")
        A("v_exp_f32 v54, v54")
        A("s_nop 0")
        A("v_add_f32 v54, 1.0, v54")
        A("v_rcp_f32 v54, v54")
        A("s_nop 0")
        A("v_mul_f32 v54, v54, v52")
        bf16r(54, 54)
        A("v_mul_f32 v54, v54, v53")
        A("v_cmp_gt_u32 vcc, 6, v2")
        A("v_cvt_pk_bf16_f32 v54, v54, v54")
        A("s_nop 0")
        A("v_cndmask_b32 v54, 0, v54, vcc")
        A(f"ds_write_b32 v{vK4}, v54 offset:{LDS_HID}")
        A("s_branch L_sj_done")
        g.lab("L_jobG")
        A("v_mov_b32 v56, 0")
        for i in range(5):
            xr = GR + i; wr = GR + 6 + i
            A(f"v_lshlrev_b32 v52, 16, v{xr}"); A(f"v_and_b32 v53, 0xffff0000, v{xr}")
            A(f"v_lshlrev_b32 v54, 16, v{wr}"); A(f"v_and_b32 v55, 0xffff0000, v{wr}")
            A("v_mul_f32 v52, v52, v54"); A("v_mul_f32 v53, v53, v55")
            A("v_cvt_pk_bf16_f32 v52, v52, v53")
            A("v_lshlrev_b32 v53, 16, v52"); A("v_and_b32 v52, 0xffff0000, v52")
            A("v_add_f32 v56, v56, v53"); A("v_add_f32 v56, v56, v52")
        red64(56, "v_add_f32")
        A("s_nop 0")
        A("v_readlane_b32 s36, v56, 63")
        A("s_nop 1")
        A("v_mov_b32 v56, s36")
        bf16r(56, 56)
        A(f"v_mul_f32 v56, {f2u(-LOG2E):#x}, v56")
        A("v_exp_f32 v56, v56")
        A("s_nop 0")
        A("v_add_f32 v56, 1.0, v56")
        A("v_rcp_f32 v56, v56")
        A("s_nop 0")
        bf16r(56, 56)
        A("v_sub_f32 v57, 1.0, v56")
        bf16r(57, 57)
        A(f"ds_write_b64 v{vZero}, v[56:57] offset:{LDS_G}")
        g.lab("L_sj_done")

    assert gq_at + D <= qpos <= 2 * NS and qpos - D >= NS
    for pos in range(D, qpos):
        if pos == gq_at: side_issue()
        if pos == NS: g.stamp(2)
        g.wait(seq[pos - D]); issue(pos)
        if pos == gq_at + D - 1: side_process()
    g.stamp(3)
    nxt = [qpos]
    def slot():
        if nxt[0] < len(seq):
            g.wait(seq[nxt[0] - D]); issue(nxt[0]); nxt[0] += 1

    A("v_lshlrev_b32 v52, 4, v3")
    for gg in range(S): A(f"v_mov_b32 v{32+gg}, 0")
    for r in range(12): A(f"v_mov_b32 v{40+r}, 0")
    g.lab("L_qwait")
    A(f"ds_read_b32 v54, v{vZero} offset:{LDS_FLAG}")
    for s in range(3): A(f"ds_read_b128 {q4(20+4*s)}, v52 offset:{LDS_Q + 128*s}")
    A("s_waitcnt lgkmcnt(0)")
    A("v_cmp_eq_u32 vcc, 0, v54")
    A("s_cmp_eq_u64 vcc, 0")
    A("s_cbranch_scc1 L_qready")
    A("s_sleep 2")
    A("s_branch L_qwait")
    g.lab("L_qready")
    g.stamp(4)
    xs = [12 * (i + 1) // (X + 1) for i in range(X)] if X else []
    for sr in range(12):
        s, r = divmod(sr, 4)
        for _ in range(xs.count(sr)): slot()
        for gg in range(S):
            A(f"v_dot2c_f32_bf16 v{32+gg}, v{KB + (3*gg+s)*4 + r}, v{20+4*s+r}")
    SR = list(range(32, 32 + S))
    red8(SR)
    for r in SR: A(f"v_cvt_pk_bf16_f32 v{r}, v{r}, v{r}")
    for r in SR: A(f"v_and_b32 v{r}, 0xffff0000, v{r}")
    for r in SR: A(f"v_mul_f32 v{r}, s49, v{r}")
    for r in SR: A(f"v_cvt_pk_bf16_f32 v{r}, v{r}, v{r}")
    for r in SR: A(f"v_and_b32 v{r}, 0xffff0000, v{r}")
    A(f"v_max_f32 v52, v32, v33")
    rest = SR[2:]
    while len(rest) >= 2:
        A(f"v_max3_f32 v52, v52, v{rest[0]}, v{rest[1]}"); rest = rest[2:]
    if rest: A(f"v_max_f32 v52, v52, v{rest[0]}")
    red8groups(52, "v_max_f32")
    A("v_mul_f32 v52, s50, v52")
    slot()
    A("s_nop 0")
    A("v_readlane_b32 s36, v52, 63")
    A("s_nop 1")
    A(f"v_mov_b32 v{vM}, s36")
    for r in SR: A(f"v_fma_f32 v{r}, v{r}, s50, -v{vM}")
    for r in SR: A(f"v_exp_f32 v{r}, v{r}")
    A(f"v_add_f32 v{vL}, v32, v33")
    for r in SR[2:]: A(f"v_add_f32 v{vL}, v{vL}, v{r}")
    for r in SR: A(f"v_cvt_pk_bf16_f32 v{r}, v{r}, v{r}")
    g.stamp(5)

    wl = [("D", 0), ("D", 1)] + [(t, u) for t in range(3) for u in range(2)]
    def w_load(i):
        t, u = wl[i]
        if t == "D": g.vmem(f"global_load_dwordx4 {q4(WB+4*i)}, v{vWd}, s[20:21] offset:{u*128} nt", ("W", i))
        else: g.vmem(f"global_load_dwordx4 {q4(WB+4*i)}, v{vWo}, s[12:13] offset:{t*1280+u*128} nt", ("W", i))
    if wmode == "early":
        A("s_cmp_lt_u32 s32, 5"); A("s_cbranch_scc0 L_nowe")
        sv = list(g.vm)
        for i in range(8): w_load(i)
        g.vm = sv
        g.lab("L_nowe")
        w1 = 0
    for idx in range(NS):
        gg, s = divmod(idx, 3)
        a = 12 + 4 * (gg & 1)
        if s == 0:
            for r in range(4): A(f"v_and_b32 v{a+r}, v{32+gg}, v{4+r}")
        g.wait(("V", idx))
        issued = False
        if nxt[0] < len(seq) and nxt[0] <= NS + idx + D:
            issue(nxt[0]); nxt[0] += 1; issued = True
        if s == 0 and not issued: A("s_nop 0")
        A(f"v_mfma_f32_16x16x32_bf16 {q4(40+4*s)}, {q4(a)}, {q4(VB+4*idx)}, {q4(40+4*s)}")
    while nxt[0] < len(seq):
        issue(nxt[0]); nxt[0] += 1
    assert g.vm[-7:] == ["grab"] + seq[-6:], g.vm[-8:]
    g.stamp(6)
    if diag: A("s_mov_b32 s51, 0")

    def softmax_item(tag):
        A("v_add_f32 v37, v37, v38")
        A("v_add_f32 v37, v37, v39")
        red8([37])
        bf16r(37, 37)
        A("v_mul_f32 v37, s49, v37")
        bf16r(37, 37)
        A(f"v_fma_f32 v38, v37, s50, -v{vM}")
        A("v_cmp_lt_f32 vcc, 0, v38")
        A("s_cmp_eq_u64 vcc, 0")
        A(f"s_cbranch_scc1 L_nors{tag}")
        A("v_mov_b32 v52, v37")
        red8groups(52, "v_max_f32")
        A("v_mul_f32 v52, s50, v52")
        A("s_nop 0")
        A("v_readlane_b32 s36, v52, 63")
        A("s_nop 1")
        A(f"v_subrev_f32 v52, s36, v{vM}")
        A("v_exp_f32 v52, v52")
        A(f"v_mov_b32 v{vM}, s36")
        A(f"v_mul_f32 v{vL}, v{vL}, v52")
        for r in range(12): A(f"v_mul_f32 v{40+r}, v{40+r}, v52")
        A(f"v_fma_f32 v38, v37, s50, -v{vM}")
        g.lab(f"L_nors{tag}")
        A("v_exp_f32 v38, v38")
        A("s_nop 0")
        A(f"v_add_f32 v{vL}, v{vL}, v38")
        A("v_cvt_pk_bf16_f32 v38, v38, v38")
        for r in range(4): A(f"v_and_b32 v{12+r}, v38, v{4+r}")
    def pv_item():
        for s in range(3): A(f"v_mfma_f32_16x16x32_bf16 {q4(40+4*s)}, v[12:15], {q4(VD+4*s)}, {q4(40+4*s)}")

    g.lab("L_dyn")
    for s in range(3): A(f"v_mov_b32 v{37+s}, 0")
    A("s_waitcnt vmcnt(3)")
    A(f"v_readfirstlane_b32 s36, v{vG}")
    for r in range(4):
        for s in range(3): A(f"v_dot2c_f32_bf16 v{37+s}, v{KD+4*s+r}, v{20+4*s+r}")
    A(f"s_cmp_ge_u32 s36, {NDYN}"); A("s_cbranch_scc1 L_dyn_last")
    grab()
    A(f"s_add_u32 s36, s36, {64 * (S + 1)}")
    A("s_mul_i32 s36, s36, 3072")
    A("v_add_u32 v9, s36, v10")
    for s in range(3): A(f"global_load_dwordx4 {q4(KD+4*s)}, v9, s[6:7] offset:{128*s} nt")
    if diag: A("s_add_u32 s51, s51, 1")
    softmax_item("a")
    A("s_waitcnt vmcnt(4)")
    A("s_nop 0")
    pv_item()
    for s in range(3): A(f"global_load_dwordx4 {q4(VD+4*s)}, v9, s[8:9] offset:{128*s} nt")
    A("s_branch L_dyn")

    g.lab("L_dyn_last")
    g.vm = ["Vlast"]
    if w1:
        A("s_cmp_lt_u32 s32, 5"); A("s_cbranch_scc0 L_now1")
        for i in range(w1): w_load(i)
        g.lab("L_now1")
    A("s_nop 1")
    softmax_item("b")
    red8groups(vL, "v_add_f32")
    A("s_lshl_b32 s36, s32, 3")
    A("v_mov_b32 v52, s36")
    A("s_mov_b32 exec_lo, 0"); A("s_mov_b32 exec_hi, 0x80000000")
    A(f"ds_write_b64 v52, v[{vM}:{vL}] offset:{LDS_ML}")
    A("s_mov_b64 exec, -1")
    A("s_mov_b32 s52, 0x00ff00ff"); A("s_mov_b32 s53, 0x00ff00ff")
    A("s_cmp_lt_u32 s32, 5"); A("s_cbranch_scc0 L_tailB")

    def owrite():
        for s in range(3): A(f"ds_write_b128 v{vOw}, {q4(40+4*s)} offset:{LDS_O + 1024*s}")
    def oreduce(cls):
        A("s_waitcnt lgkmcnt(0)")
        A("s_barrier")
        A(f"ds_read_b64 v[50:51], v{vMLr} offset:{LDS_ML}")
        for t in range(3): A(f"ds_read2_b32 v[{44+2*t}:{45+2*t}], v{vOr[t]} offset1:160")
        if cls == "A":
            A(f"ds_read_b32 v{vHid}, v{vK4} offset:{LDS_HID}")
            A(f"ds_read_b64 v[{vG2}:{vG2+1}], v{vZero} offset:{LDS_G}")
        n = 2 if cls == "A" else 0
        A("s_waitcnt lgkmcnt(0)" if diag else f"s_waitcnt lgkmcnt({n+3})")
        A(f"v_max_f32_dpp v52, v50, v50 quad_perm:[1,0,3,2] {DPP}")
        A("s_nop 1")
        A(f"v_max_f32_dpp v52, v52, v52 quad_perm:[2,3,0,1] {DPP}")
        A("s_nop 1")
        A(f"v_max_f32_dpp v52, v52, v52 row_half_mirror {DPP}")
        A("v_and_b32 v52, 0xffffff00, v52")
        A("v_sub_f32 v50, v50, v52")
        A("v_exp_f32 v50, v50")
        A(f"s_waitcnt lgkmcnt({0 if diag else n})")
        for t in range(3): A(f"v_add_f32 v{40+t}, v{44+2*t}, v{45+2*t}")
        A("v_mul_f32 v43, v51, v50")
        for t in range(3): A(f"v_mul_f32 v{40+t}, v{40+t}, v50")
        red8([43, 40, 41, 42])
        A("v_cndmask_b32 v43, v43, v52, s[52:53]")
        for r in range(4): A(f"v_bfi_b32 v{40+r}, v8, s34, v{40+r}")
        A("s_mov_b32 exec_lo, 0x01010101"); A("s_mov_b32 exec_hi, 0x01010101")
        g.vmem(f"global_store_dwordx4 v{vOPst}, v[40:43], s[42:43] sc1", "opst")
        A("s_mov_b64 exec, -1")

    g.wait("Vlast")
    pv_item()
    nw = 0
    if wmode == "pv":
        for i in range(w1, 8): w_load(i); nw += 1
    g.stamp(7)
    if nw < 7: A(f"s_nop {6 - nw}")
    owrite()
    oreduce("A")
    g.stamp(8)
    if wmode == "afterpub" or pubbar: A("s_barrier")
    if wmode == "afterpub":
        for i in range(w1, 8): w_load(i)
    def ogather():
        A(f"global_load_dwordx4 v[32:35], v{vGat}, s[42:43] sc1")
    ogather(); g.vm += ["og"]
    A("s_waitcnt lgkmcnt(0)")
    for r in range(4): A(f"v_and_b32 v{12+r}, v{vHid}, v{4+r}")
    if wmode != "early": g.wait(("W", 1))
    else: A("s_nop 0")
    A("s_nop 0")
    A(f"v_mfma_f32_16x16x32_bf16 v[44:47], v[12:15], {q4(WB)}, 0")
    A(f"v_mfma_f32_16x16x32_bf16 v[48:51], v[12:15], {q4(WB+4)}, 0")
    A("s_nop 7")
    for r in range(4): A(f"v_permlane32_swap_b32 v{44+r}, v{48+r}")
    for r in range(4): A(f"v_add_f32_dpp v{44+r}, v{48+r}, v{44+r} row_ror:8 {DPP}")
    for r in range(4): A(f"v_mul_f32 v{56+r}, v{vG2+1}, v{44+r}")
    A("s_waitcnt vmcnt(0)")
    g.lab("L_o_chk")
    tagcheck([35, 32, 33, 34], 52)
    retry("o", ogather)
    g.stamp(9)
    A(f"v_mov_b32_dpp v38, v35 row_ror:8 {DPP}")
    A("v_cndmask_b32 v37, v38, v35, s[52:53]")
    A("v_cndmask_b32 v36, v35, v38, s[52:53]")
    A("s_nop 0")
    A(f"v_max_f32_dpp v38, v37, v37 quad_perm:[1,0,3,2] {DPP}")
    A("s_nop 1")
    A(f"v_max_f32_dpp v38, v38, v38 quad_perm:[2,3,0,1] {DPP}")
    A("s_nop 1")
    A(f"v_max_f32_dpp v38, v38, v38 row_half_mirror {DPP}")
    A("v_sub_f32 v37, v37, v38")
    A("v_exp_f32 v37, v37")
    A("s_nop 0")
    for r in (36, 32, 33, 34): A(f"v_mul_f32 v{r}, v{r}, v37")
    red8([36, 32, 33, 34])
    A("v_rcp_f32 v36, v36")
    A("s_nop 0")
    for t in range(3): A(f"v_mul_f32 v{32+t}, v{32+t}, v36")
    for t in range(3): A(f"v_cvt_pk_bf16_f32 v{32+t}, v{32+t}, v{32+t}")
    areg = [12, 16, 36]
    for t in range(3):
        for r in range(4): A(f"v_and_b32 v{areg[t]+r}, v{32+t}, v{4+r}")
    for t in range(3):
        for u in range(2):
            c = "0" if t == 0 else q4(44+4*u)
            A(f"v_mfma_f32_16x16x32_bf16 {q4(44+4*u)}, {q4(areg[t])}, {q4(WB+4*(2+2*t+u))}, {c}")
    A("s_nop 7")
    for r in range(4): A(f"v_permlane32_swap_b32 v{44+r}, v{48+r}")
    for r in range(4): A(f"v_add_f32_dpp v{44+r}, v{48+r}, v{44+r} row_ror:8 {DPP}")
    for r in range(4): A(f"v_fma_f32 v{44+r}, v{44+r}, v{vG2}, v{56+r}")
    for r in range(4): A(f"v_bfi_b32 v{44+r}, v8, s34, v{44+r}")
    A("s_mov_b32 exec_lo, 0x00ff00ff"); A("s_mov_b32 exec_hi, 0x00ff00ff")
    A(f"global_store_dwordx4 v{vFP}, v[44:47], s[28:29] sc1")
    A("s_mov_b64 exec, -1")
    g.stamp(10)
    A("s_barrier")
    A("s_branch L_exit")

    g.lab("L_tailB")
    A("s_waitcnt vmcnt(0)")
    pv_item()
    g.stamp(7)
    A("s_nop 6")
    owrite()
    oreduce("B")
    g.stamp(8)
    if wmode == "afterpub" or pubbar: A("s_barrier")
    A("s_cmp_lt_u32 s32, 7"); A("s_cbranch_scc1 L_exit")
    A("s_cmp_ge_u32 s2, 80"); A("s_cbranch_scc1 L_exit")
    A("s_lshl_b32 s36, s2, 13"); A(f"s_add_u32 s36, s36, {FP_OFF}")
    A("s_add_u32 s40, s28, s36"); A("s_addc_u32 s41, s29, 0")
    A(f"v_add_u32 v23, 4096, v{vL16}")
    A("s_lshr_b32 s36, s2, 4"); A("s_lshl_b32 s36, s36, 7")
    A("s_bfe_u32 s37, s2, 0x10003"); A("s_lshl_b32 s37, s37, 6"); A("s_add_u32 s36, s36, s37")
    A("s_and_b32 s37, s2, 3"); A("s_lshl_b32 s37, s37, 4"); A("s_add_u32 s36, s36, s37")
    A("s_bfe_u32 s37, s2, 0x10002"); A("s_lshl_b32 s37, s37, 2"); A("s_add_u32 s36, s36, s37")
    A("v_and_b32 v52, 1, v1"); A("v_lshlrev_b32 v52, 3, v52")
    A("v_lshrrev_b32 v53, 4, v1")
    A("v_add3_u32 v24, v52, v53, s36")
    A("v_lshlrev_b32 v24, 1, v24")
    A("s_barrier")
    g.stamp(9)
    def fgather():
        for k in range(8): A(f"global_load_dwordx4 {q4(KB+4*k)}, v23, s[40:41] offset:{k*1024-4096} sc1")
    fgather()
    A("s_waitcnt vmcnt(0)")
    g.lab("L_f_chk")
    tagcheck(range(KB, KB + 32), 52, pair=True)
    retry("f", fgather, masked=True)
    g.stamp(10)
    for st in (16, 8, 4):
        for r in range(st): A(f"v_add_f32 v{KB+r}, v{KB+r}, v{KB+st+r}")
    A("s_nop 0")
    A(f"v_permlane32_swap_b32 v{KB}, v{KB+2}")
    A(f"v_permlane32_swap_b32 v{KB+1}, v{KB+3}")
    A(f"v_add_f32 v{KB}, v{KB}, v{KB+2}")
    A(f"v_add_f32 v{KB+1}, v{KB+1}, v{KB+3}")
    A("s_nop 1")
    A(f"v_permlane16_swap_b32 v{KB}, v{KB+1}")
    A(f"v_add_f32 v{KB}, v{KB}, v{KB+1}")
    for mode in ("row_ror:8", "row_ror:4", "row_ror:2"):
        A("s_nop 1"); A(f"v_add_f32_dpp v{KB}, v{KB}, v{KB} {mode} {DPP}")
    A(f"v_cvt_pk_bf16_f32 v{KB}, v{KB}, v{KB}")
    A("s_mov_b32 exec_lo, 0x00030003"); A("s_mov_b32 exec_hi, 0x00030003")
    A(f"global_store_short v24, v{KB}, s[24:25]")
    A("s_cmp_lg_u32 s2, 0"); A("s_cbranch_scc1 L_exit")
    A("s_mov_b64 exec, 1")
    A("v_mov_b32 v53, s33")
    A(f"global_store_dword v{vZero}, v53, s[28:29]")
    g.lab("L_exit")
    if diag:
        g.stamp(11)
        A("s_mov_b64 exec, 1")
        A("s_lshl_b32 s36, s2, 3"); A("s_add_u32 s36, s36, s32"); A("s_lshl_b32 s36, s36, 7")
        A(f"s_add_u32 s36, s36, {STAMP_OFF}")
        if wsbase: A(f"s_sub_u32 s28, s28, {wsbase}"); A("s_subb_u32 s29, s29, 0")
        A("v_mov_b32 v52, s36")
        A("s_getreg_b32 s37, hwreg(HW_REG_XCC_ID)")
        A("s_waitcnt lgkmcnt(0)")
        A("s_mov_b32 s88, s46"); A("s_mov_b32 s89, s37"); A("s_mov_b32 s90, s51")
        for k in range(8):
            for r in range(4): A(f"v_mov_b32 v{KB+4*k+r}, s{64+4*k+r}")
            A(f"global_store_dwordx4 v52, {q4(KB+4*k)}, s[28:29] offset:{16*k}")
    g.lab("L_end")
    A("s_endpgm")
    L.append('.section .rodata,"a"'); L.append(".p2align 6"); L.append(f".amdhsa_kernel {KN}")
    L.append("  .amdhsa_next_free_vgpr 256")
    L.append("  .amdhsa_next_free_sgpr 96")
    L.append("  .amdhsa_accum_offset 256")
    L.append("  .amdhsa_group_segment_fixed_size 0"); L.append("  .amdhsa_kernarg_size 104")
    L.append("  .amdhsa_user_sgpr_count 2"); L.append("  .amdhsa_user_sgpr_kernarg_segment_ptr 1")
    L.append("  .amdhsa_system_sgpr_workgroup_id_x 1")
    L.append("  .amdhsa_float_denorm_mode_32 3")
    L.append(".end_amdhsa_kernel")
    return "\n".join(L) + "\n"

if __name__ == "__main__":
    import argparse, hazard, ast
    ap = argparse.ArgumentParser()
    ap.add_argument("-o", default="gated_mix__sliding_block_cached__geglu_ffn__decode.s")
    ap.add_argument("kv", nargs="*")
    a = ap.parse_args()
    kw = {}
    for x in a.kv:
        k, v = x.split("="); kw[k] = ast.literal_eval(v)
    t = gen(**kw)
    open(a.o, "w").write(t)
    pr = hazard.check(t)
    for x in pr: print(x)
    print(len(pr), "hazard findings")
```

```python
import sys, struct
KN = "gated_mix__sliding_block_cached__geglu_ffn__decode_kernel"

QP_OFF = 4096
CNT_OFF = QP_OFF + 32 * 10240
OP_OFF = CNT_OFF + 32 * 1024
FP_OFF = OP_OFF + 32 * 8192
STAMP_OFF = 1 << 22

LDS_Q = 0
LDS_G = 384
LDS_FLAG = 392
LDS_HID = 400
LDS_ML = 448
LDS_O = 512
OSTR = 3072 + 16
LDS_BYTES = LDS_O + 8 * OSTR

def f2u(f): return struct.unpack("<I", struct.pack("<f", f))[0]
LOG2E = 1.4426950408889634

HEADER = open("gated_mix__sliding_block_cached__geglu_ffn__decode.s.ref").read().split("; Override")[0]

class G:
    def __init__(s, diag=False):
        s.L = []; s.vm = []; s.diag = diag
    def A(s, x): s.L.append("    " + x)
    def lab(s, x): s.L.append(x + ":")
    def c(s, x): s.L.append("    ; " + x)
    def vmem(s, x, tag=None):
        s.A(x); s.vm.append(tag)
    def wait(s, tag):
        idx = max(i for i, t in enumerate(s.vm) if t == tag)
        n = len(s.vm) - 1 - idx
        s.A(f"s_waitcnt vmcnt({n})")
    def stamp(s, i):
        if s.diag: s.A(f"s_memrealtime s[{64+2*i}:{65+2*i}]")

def q4(b): return f"v[{b}:{b+3}]"
DPP = "row_mask:0xf bank_mask:0xf"

def gen(S=5, D=4, X=2, diag=False, spin=200000, prefetch_code=True, gq_at=18, qpos=24, w1=3, layout="inter", dbgsum=False, wmode="pv", pretouch=False, pubbar=False, wsbase=0, leak=None):
    g = G(diag); A = g.A
    L = g.L
    NS = 3 * S
    KB = 64; VB = KB + 4 * NS; KD = VB + 4 * NS; VD = KD + 12; WB = VD + 12
    assert WB + 32 <= 240
    NDYN = 512 - 64 * (S + 1)
    vM, vL, vG, vCnt = 60, 61, 62, 63
    vWo, vWd, vL16, vOw, vOPst, vMLr, vK4, vZero, vOne, vHid, vG2, vFP, vGat = 240, 241, 242, 243, 245, 247, 248, 249, 250, 251, 252, 254, 255
    vOr = (244, 246, 11)
    IS = 64 * 3072 if layout == "inter" else 3072
    L.append(HEADER.rstrip())
    L.append(f"; @launch grid=(256,1,1) block=(512,1,1) lds={LDS_BYTES}")
    L.append('.amdgcn_target "amdgcn-amd-amdhsa--gfx950"')
    L.append(".text"); L.append(f".globl {KN}"); L.append(".p2align 8"); L.append(f".type {KN},@function")
    g.lab(KN)
    A("s_cmp_ge_u32 s2, 256"); A("s_cbranch_scc1 L_end")
    A("s_load_dwordx16 s[4:19], s[0:1], 0")
    A("s_load_dwordx8 s[20:27], s[0:1], 64")
    A("s_load_dwordx2 s[28:29], s[0:1], 96")
    g.stamp(0)
    A("v_lshrrev_b32 v52, 6, v0")
    A("v_and_b32 v1, 63, v0")
    A("v_readfirstlane_b32 s32, v52")
    A("v_lshrrev_b32 v2, 3, v1")
    A("v_and_b32 v3, 7, v1")
    A(f"v_mov_b32 v{vZero}, 0")
    A(f"v_mov_b32 v{vGat}, 0")
    A("s_lshr_b32 s30, s2, 3")
    A("s_and_b32 s31, s2, 7")
    A(f"ds_write_b32 v{vZero}, v{vZero} offset:{LDS_FLAG}")
    A("v_mul_u32_u24 v10, 384, v2")
    A("v_lshl_add_u32 v10, v3, 4, v10")
    A("s_lshl_b32 s36, s31, 3"); A("s_add_u32 s36, s36, s32")
    A(f"s_mul_i32 s36, s36, {3072 if layout == 'inter' else 3072 * (S + 1)}")
    A("v_add_u32 v9, s36, v10")
    A("s_mul_i32 s35, s30, 12582912")
    A(f"s_add_u32 s35, s35, {28672*384}")
    A("s_lshl_b32 s36, s30, 10"); A(f"s_add_u32 s36, s36, {CNT_OFF}")
    A(f"v_mov_b32 v{vCnt}, s36")
    A("s_cmp_lt_u32 s32, 5")
    A("s_waitcnt lgkmcnt(0)")
    A("s_barrier")
    if wsbase:
        A(f"s_add_u32 s28, s28, {wsbase}"); A("s_addc_u32 s29, s29, 0"); A("s_cmp_lt_u32 s32, 5")
    A("s_load_dword s33, s[28:29], 0")
    A("s_cbranch_scc0 L_proB")

    seq = [("K", t) for t in range(NS)] + [("V", t) for t in range(NS)] + [("Kd", t) for t in range(3)] + [("Vd", t) for t in range(3)]
    cur = [0]
    def grab():
        A("s_mov_b64 exec, 1")
        g.vmem(f"global_atomic_add v{vG}, v{vCnt}, v{vOne}, s[28:29] sc0 sc1", "grab")
        A("s_mov_b64 exec, -1")
    def issue(pos):
        kind, idx = seq[pos]
        if kind in ("K", "V"): item, s = divmod(idx, 3)
        else: item, s = S, idx
        off = item * IS + s * 128
        d = off - cur[0]
        if d > 4095 or d < -4096:
            A(f"v_add_u32 v9, {item * IS - cur[0]}, v9"); cur[0] = item * IS; d = s * 128
        if (kind, idx) == ("Kd", 0): grab()
        reg = {"K": KB, "V": VB, "Kd": KD, "Vd": VD}[kind] + 4 * idx
        base = "s[6:7]" if kind[0] == "K" else "s[8:9]"
        g.vmem(f"global_load_dwordx4 {q4(reg)}, v9, {base} offset:{d} nt", (kind, idx))

    def consts():
        A("v_and_b32 v52, 1, v1")
        A("v_mov_b32 v53, 0xffff")
        A("v_lshlrev_b32 v52, 4, v52")
        A("v_lshlrev_b32 v53, v52, v53")
        A("v_lshrrev_b32 v52, 1, v3")
        for r in range(4):
            A(f"v_cmp_eq_u32 vcc, {r}, v52")
            A("s_nop 1")
            A(f"v_cndmask_b32 v{4+r}, 0, v53, vcc")
        A("v_mov_b32 v8, 0xff")
        A(f"v_mov_b32 v{vOne}, 1")
        A(f"s_mov_b32 s49, {f2u(192 ** -0.5):#x}")
        A(f"s_mov_b32 s50, {f2u(LOG2E):#x}")
        A(f"s_mov_b32 s46, {spin}")
        A("s_mul_i32 s36, s30, 10240"); A(f"s_add_u32 s36, s36, {QP_OFF}")
        A("s_add_u32 s44, s28, s36"); A("s_addc_u32 s45, s29, 0")
        A("s_mul_i32 s36, s30, 192"); A("s_mul_i32 s37, s31, 24"); A("s_add_u32 s36, s36, s37"); A("s_mul_i32 s36, s36, 1280")
        A("s_add_u32 s12, s12, s36"); A("s_addc_u32 s13, s13, 0")
        A("s_mul_i32 s36, s30, 48"); A("s_mul_i32 s37, s31, 6"); A("s_add_u32 s36, s36, s37"); A("s_mul_i32 s36, s36, 1280")
        A("s_add_u32 s20, s20, s36"); A("s_addc_u32 s21, s21, 0")
        A("s_lshl_b32 s36, s32, 8")
        A("v_lshl_add_u32 v53, v3, 4, s36")
        A(f"v_mul_u32_u24 v{vWo}, 3840, v2")
        A(f"v_add_u32 v{vWo}, v{vWo}, v53")
        A("v_min_u32 v52, 5, v2")
        A(f"v_mul_u32_u24 v{vWd}, 1280, v52")
        A(f"v_add_u32 v{vWd}, v{vWd}, v53")
        A(f"v_lshlrev_b32 v{vL16}, 4, v1")
        A(f"s_mul_i32 s36, s32, {OSTR}")
        A(f"v_add_u32 v{vOw}, s36, v{vL16}")
        A("s_mul_i32 s36, s32, 24")
        A("v_mul_u32_u24 v52, 3, v2")
        A(f"v_mul_u32_u24 v54, {OSTR}, v3")
        for t, reg in enumerate(vOr):
            A(f"v_add3_u32 v55, v52, s36, {t}")
            A("v_lshrrev_b32 v53, 6, v55"); A(f"v_lshl_add_u32 v{reg}, v53, 10, v54")
            A("v_bfe_u32 v53, v55, 3, 3"); A(f"v_lshl_add_u32 v{reg}, v53, 4, v{reg}")
            A("v_bfe_u32 v53, v55, 2, 1"); A(f"v_lshl_add_u32 v{reg}, v53, 8, v{reg}")
            A("v_and_b32 v53, 3, v55"); A(f"v_lshl_add_u32 v{reg}, v53, 2, v{reg}")
            A(f"v_add_u32 v{reg}, {LDS_O}, v{reg}")
        A("s_lshl_b32 s36, s30, 13"); A(f"s_add_u32 s36, s36, {OP_OFF}")
        A("s_add_u32 s42, s28, s36"); A("s_addc_u32 s43, s29, 0")
        A("s_lshl_b32 s36, s32, 10"); A("s_lshl_b32 s37, s31, 4"); A("s_add_u32 s36, s36, s37")
        A(f"v_lshl_add_u32 v{vOPst}, v2, 7, s36")
        A(f"v_lshlrev_b32 v{vMLr}, 3, v3")
        A(f"v_lshlrev_b32 v{vK4}, 2, v2")

    g.c("waves 0-4: partial projections of x rows [80c, 80c+80)")
    A("s_or_b32 s36, s31, s32"); A("s_cmp_lg_u32 s36, 0"); A("s_cbranch_scc1 L_noinit")
    A("s_mov_b64 exec, 1")
    A(f"global_store_dword v{vCnt}, v{vZero}, s[28:29] sc1")
    A("s_mov_b64 exec, -1")
    g.lab("L_noinit")
    A("s_mul_i32 s36, s30, 384"); A("s_lshl_b32 s37, s32, 7"); A("s_add_u32 s36, s36, s37")
    A("s_mul_i32 s37, s30, 96")
    A("s_cmp_eq_u32 s32, 3")
    A("s_cselect_b32 s40, s16, s18"); A("s_cselect_b32 s41, s17, s19")
    A("s_cmp_lt_u32 s32, 3")
    A("s_cselect_b32 s40, s10, s40"); A("s_cselect_b32 s41, s11, s41")
    A("s_cselect_b32 s36, s36, s37")
    A("s_movk_i32 s38, 3072")
    A("s_cselect_b32 s38, 12288, s38")
    A("s_cselect_b32 s37, 7, 5")
    A("s_add_u32 s40, s40, s36"); A("s_addc_u32 s41, s41, 0")
    A("s_mul_i32 s36, s31, 80")
    A("v_mul_u32_u24 v52, 10, v2")
    A("v_add_u32 v52, s36, v52")
    A("v_lshlrev_b32 v53, 1, v52")
    g.vmem("global_load_dwordx4 v[20:23], v53, s[4:5] nt", "x0")
    g.vmem("global_load_dword v24, v53, s[4:5] offset:16 nt", "x1")
    A("v_mul_u32_u24 v52, s38, v52")
    A("v_min_u32 v53, s37, v3")
    A("v_lshl_add_u32 v52, v53, 4, v52")
    for t in range(10):
        g.vmem(f"global_load_dwordx4 {q4(VB+4*t)}, v52, s[40:41] nt", ("P", t))
        if t < 9: A("v_add_u32 v52, s38, v52")
    A("s_add_u32 s6, s6, s35"); A("s_addc_u32 s7, s7, 0")
    A("s_add_u32 s8, s8, s35"); A("s_addc_u32 s9, s9, 0")
    consts()
    A("v_lshrrev_b32 v52, 4, v1")
    A("v_lshlrev_b32 v52, 2, v52")
    A("v_bfe_u32 v53, v1, 1, 2")
    A("v_add_u32 v52, v52, v53")
    A("s_lshl_b32 s36, s32, 4")
    A("v_add_u32 v52, s36, v52")
    A("v_lshlrev_b32 v52, 13, v52")
    A("v_and_b32 v53, 1, v1")
    A("v_lshl_add_u32 v52, v53, 4, v52")
    A("s_lshl_b32 s36, s2, 5"); A(f"s_add_u32 s36, s36, {FP_OFF}")
    A(f"v_add_u32 v{vFP}, s36, v52")
    A("s_lshl_b32 s36, s31, 10")
    A(f"v_add_u32 v{vGat}, s36, v{vL16}")
    A("s_mov_b32 s47, 0x01000100"); A("s_mov_b32 s48, 0x03020302")
    for r in range(4): A(f"v_mov_b32 v{40+r}, 0")
    A("s_lshl_b32 s36, s32, 11")
    A("s_lshl_b32 s37, s31, 8"); A("s_add_u32 s36, s36, s37")
    A("v_lshlrev_b32 v54, 5, v3")
    A("v_bfe_u32 v53, v1, 4, 1")
    A("v_lshl_add_u32 v54, v53, 4, v54")
    A("v_lshrrev_b32 v53, 5, v1")
    A("v_lshl_add_u32 v54, v53, 3, v54")
    A("v_add_u32 v54, s36, v54")
    for t in range(10):
        g.wait(("P", t))
        if t >= 10 - D: issue(t - (10 - D))
        a = 12 + 4 * (t & 1)
        A(f"v_perm_b32 v52, v{20 + t//2}, v{20 + t//2}, s{47 + (t & 1)}")
        for r in range(4): A(f"v_and_b32 v{a+r}, v52, v{4+r}")
        A("s_nop 1")
        A(f"v_mfma_f32_16x16x32_bf16 v[40:43], {q4(a)}, {q4(VB+4*t)}, v[40:43]")
    A("s_waitcnt lgkmcnt(0)")
    A("s_add_u32 s33, s33, 1"); A("s_and_b32 s34, s33, 0xff")
    A("s_nop 4")
    A("v_permlane32_swap_b32 v40, v42")
    A("v_permlane32_swap_b32 v41, v43")
    A("s_nop 1")
    A(f"v_add_f32_dpp v40, v42, v40 row_ror:8 {DPP}")
    A(f"v_add_f32_dpp v41, v43, v41 row_ror:8 {DPP}")
    A("v_bfi_b32 v40, v8, s34, v40")
    A("v_bfi_b32 v41, v8, s34, v41")
    A("s_mov_b32 exec_lo, 0x00ff00ff"); A("s_mov_b32 exec_hi, 0x00ff00ff")
    A("global_store_dwordx2 v54, v[40:41], s[44:45] sc1")
    A("s_mov_b64 exec, -1")
    g.stamp(1)
    A("s_branch L_join1")
    cur_join = cur[0]

    g.lab("L_proB")
    g.vm = []; cur[0] = 0
    A("s_add_u32 s6, s6, s35"); A("s_addc_u32 s7, s7, 0")
    A("s_add_u32 s8, s8, s35"); A("s_addc_u32 s9, s9, 0")
    for t in range(D): issue(t)
    assert cur[0] == cur_join
    if prefetch_code:
        A("s_cmp_eq_u32 s32, 5"); A("s_cbranch_scc0 L_nopf")
        A("s_getpc_b64 s[36:37]")
        g.lab("L_pc")
        A(f"s_sub_u32 s36, s36, L_pc-{KN}"); A("s_subb_u32 s37, s37, 0")
        A("v_lshlrev_b32 v53, 7, v1")
        A(f"v_min_u32 v53, L_end-{KN}, v53")
        A("global_load_dword v31, v53, s[36:37]")
        g.lab("L_nopf")
    consts()
    A(f"v_mov_b32 v{vFP}, 0")
    if pretouch:
        A("s_cmp_eq_u32 s32, 6"); A("s_cbranch_scc0 L_nopt6")
        A("s_lshl_b32 s36, s31, 10")
        A(f"v_add_u32 v53, s36, v{vL16}")
        A(f"global_load_dwordx4 {q4(WB)}, v53, s[42:43] sc1")
        g.lab("L_nopt6")
        A("s_cmp_eq_u32 s32, 7"); A("s_cbranch_scc0 L_nopt7")
        A("s_cmp_lt_u32 s2, 80"); A("s_cbranch_scc0 L_nopt7")
        A("s_lshl_b32 s36, s2, 13"); A(f"s_add_u32 s36, s36, {FP_OFF}")
        A("v_lshlrev_b32 v53, 7, v1")
        A("v_add_u32 v53, s36, v53")
        A(f"global_load_dword v{WB}, v53, s[28:29] sc1")
        g.lab("L_nopt7")
    A("s_waitcnt lgkmcnt(0)")
    A("s_add_u32 s33, s33, 1"); A("s_and_b32 s34, s33, 0xff")
    g.stamp(1)

    g.lab("L_join1")
    g.vm = [seq[i] for i in range(D)]
    GR = WB
    def qgather():
        for p in range(8): A(f"global_load_dwordx4 {q4(GR+4*p)}, v{vGat}, s[44:45] offset:{p*256} sc1")
    def hgather():
        A(f"global_load_dword v{GR}, v{vGat}, s[44:45] sc1")
        A(f"global_load_dword v{GR+1}, v{vGat}, s[44:45] offset:2048 sc1")

    def retry(name, reload_fn, masked=False):
        A("s_cmp_eq_u64 vcc, 0")
        A(f"s_cbranch_scc1 L_{name}_ok")
        A("s_sub_u32 s46, s46, 1"); A("s_cbranch_scc1 L_%s_ok" % name)
        if masked: A("s_mov_b64 exec, vcc")
        reload_fn()
        A("s_waitcnt vmcnt(0)")
        A(f"s_branch L_{name}_chk")
        g.lab(f"L_{name}_ok")
        if masked: A("s_mov_b64 exec, -1")

    def tagcheck(rlist, tmp, pair=False):
        for r in rlist: A(f"v_xor_b32 v{r}, s34, v{r}")
        rl = list(rlist)
        if len(rl) == 1: A(f"v_mov_b32 v{tmp}, v{rl[0]}"); rl = []
        elif len(rl) == 2: A(f"v_or_b32 v{tmp}, v{rl[0]}, v{rl[1]}"); rl = []
        else: A(f"v_or3_b32 v{tmp}, v{rl[0]}, v{rl[1]}, v{rl[2]}"); rl = rl[3:]
        while len(rl) >= 2:
            A(f"v_or3_b32 v{tmp}, v{tmp}, v{rl[0]}, v{rl[1]}"); rl = rl[2:]
        if rl: A(f"v_or_b32 v{tmp}, v{tmp}, v{rl[0]}")
        if pair:
            A("s_nop 1")
            A(f"v_or_b32_dpp v{tmp}, v{tmp}, v{tmp} quad_perm:[1,0,3,2] {DPP}")
        A(f"v_and_b32 v{tmp}, v8, v{tmp}")
        A(f"v_cmp_ne_u32 vcc, 0, v{tmp}")

    def red8(regs, op="v_add_f32"):
        for mode in ("quad_perm:[1,0,3,2]", "quad_perm:[2,3,0,1]", "row_half_mirror"):
            if len(regs) < 3: A(f"s_nop {2 - len(regs)}")
            for r in regs: A(f"{op}_dpp v{r}, v{r}, v{r} {mode} {DPP}")

    def bf16r(dst, src):
        A(f"v_cvt_pk_bf16_f32 v{dst}, v{src}, v{src}")
        A(f"v_and_b32 v{dst}, 0xffff0000, v{dst}")

    def red64(r, op):
        for mode in ("quad_perm:[1,0,3,2]", "quad_perm:[2,3,0,1]", "row_half_mirror", "row_mirror"):
            A("s_nop 1"); A(f"{op}_dpp v{r}, v{r}, v{r} {mode} {DPP}")
        A("s_nop 1"); A(f"{op}_dpp v{r}, v{r}, v{r} row_bcast:15 row_mask:0xa bank_mask:0xf")
        A("s_nop 1"); A(f"{op}_dpp v{r}, v{r}, v{r} row_bcast:31 row_mask:0xc bank_mask:0xf")

    def red8groups(r, op):
        A("s_nop 1"); A(f"{op}_dpp v{r}, v{r}, v{r} row_ror:8 {DPP}")
        A("s_nop 1"); A(f"{op}_dpp v{r}, v{r}, v{r} row_bcast:15 row_mask:0xa bank_mask:0xf")
        A("s_nop 1"); A(f"{op}_dpp v{r}, v{r}, v{r} row_bcast:31 row_mask:0xc bank_mask:0xf")

    def side_issue():
        A("s_cmp_lt_u32 s32, 5"); A("s_cbranch_scc1 L_sj_issued")
        A("s_cmp_eq_u32 s32, 5"); A("s_cbranch_scc1 L_sjG")
        A("s_cmp_eq_u32 s32, 6"); A("s_cbranch_scc1 L_sjH")
        A("v_min_u32 v52, 47, v1")
        A("v_lshrrev_b32 v53, 4, v52")
        A("v_and_b32 v52, 15, v52")
        A("v_lshlrev_b32 v52, 4, v52")
        A(f"v_lshl_add_u32 v{vGat}, v53, 11, v52")
        qgather()
        A("s_branch L_sj_issued")
        g.lab("L_sjH")
        A("v_min_u32 v52, 5, v2")
        A("s_mul_i32 s36, s31, 6")
        A("v_add_u32 v52, s36, v52")
        A("v_lshlrev_b32 v52, 2, v52")
        A(f"v_lshl_add_u32 v{vGat}, v3, 8, v52")
        A(f"v_add_u32 v{vGat}, 6144, v{vGat}")
        hgather()
        A("s_branch L_sj_issued")
        g.lab("L_sjG")
        A("v_mul_u32_u24 v53, 20, v1")
        A(f"global_load_dwordx4 {q4(GR)}, v53, s[4:5] nt")
        A(f"global_load_dword v{GR+4}, v53, s[4:5] offset:16 nt")
        A(f"global_load_dwordx4 {q4(GR+6)}, v53, s[22:23] nt")
        A(f"global_load_dword v{GR+10}, v53, s[22:23] offset:16 nt")
        g.lab("L_sj_issued")

    def side_process():
        A("s_cmp_lt_u32 s32, 5"); A("s_cbranch_scc1 L_sj_done")
        A("s_cmp_eq_u32 s32, 5"); A("s_cbranch_scc1 L_jobG")
        A("s_cmp_eq_u32 s32, 6"); A("s_cbranch_scc1 L_h_chk")
        g.lab("L_q_chk")
        tagcheck(range(GR, GR + 32), 52)
        retry("q", qgather)
        for st in (16, 8, 4):
            for r in range(st): A(f"v_add_f32 v{GR+r}, v{GR+r}, v{GR+st+r}")
        A(f"v_cvt_pk_bf16_f32 v52, v{GR}, v{GR+1}")
        A(f"v_cvt_pk_bf16_f32 v53, v{GR+2}, v{GR+3}")
        A("v_min_u32 v54, 47, v1")
        A("v_lshlrev_b32 v54, 3, v54")
        A(f"ds_write_b64 v54, v[52:53] offset:{LDS_Q}")
        A(f"ds_write_b32 v{vZero}, v{vOne} offset:{LDS_FLAG}")
        A("s_branch L_sj_done")
        g.lab("L_h_chk")
        tagcheck([GR, GR + 1], 52)
        retry("h", hgather)
        red8([GR, GR + 1])
        bf16r(52, GR); bf16r(53, GR + 1)
        A("v_mul_f32 v54, v52, v52")
        A(f"v_mov_b32 v55, {f2u(0.044715):#x}")
        A("v_fma_f32 v54, v54, v55, 1.0")
        A("v_mul_f32 v54, v54, v52")
        A(f"v_mul_f32 v54, {f2u(-2 * 0.7978845608028654 * LOG2E):#x}, v54")
        A("v_exp_f32 v54, v54")
        A("s_nop 0")
        A("v_add_f32 v54, 1.0, v54")
        A("v_rcp_f32 v54, v54")
        A("s_nop 0")
        A("v_mul_f32 v54, v54, v52")
        bf16r(54, 54)
        A("v_mul_f32 v54, v54, v53")
        A("v_cmp_gt_u32 vcc, 6, v2")
        A("v_cvt_pk_bf16_f32 v54, v54, v54")
        A("s_nop 0")
        A("v_cndmask_b32 v54, 0, v54, vcc")
        A(f"ds_write_b32 v{vK4}, v54 offset:{LDS_HID}")
        A("s_branch L_sj_done")
        g.lab("L_jobG")
        A("v_mov_b32 v56, 0")
        for i in range(5):
            xr = GR + i; wr = GR + 6 + i
            A(f"v_lshlrev_b32 v52, 16, v{xr}"); A(f"v_and_b32 v53, 0xffff0000, v{xr}")
            A(f"v_lshlrev_b32 v54, 16, v{wr}"); A(f"v_and_b32 v55, 0xffff0000, v{wr}")
            A("v_mul_f32 v52, v52, v54"); A("v_mul_f32 v53, v53, v55")
            A("v_cvt_pk_bf16_f32 v52, v52, v53")
            A("v_lshlrev_b32 v53, 16, v52"); A("v_and_b32 v52, 0xffff0000, v52")
            A("v_add_f32 v56, v56, v53"); A("v_add_f32 v56, v56, v52")
        red64(56, "v_add_f32")
        A("s_nop 0")
        A("v_readlane_b32 s36, v56, 63")
        A("s_nop 1")
        A("v_mov_b32 v56, s36")
        bf16r(56, 56)
        A(f"v_mul_f32 v56, {f2u(-LOG2E):#x}, v56")
        A("v_exp_f32 v56, v56")
        A("s_nop 0")
        A("v_add_f32 v56, 1.0, v56")
        A("v_rcp_f32 v56, v56")
        A("s_nop 0")
        bf16r(56, 56)
        A("v_sub_f32 v57, 1.0, v56")
        bf16r(57, 57)
        A(f"ds_write_b64 v{vZero}, v[56:57] offset:{LDS_G}")
        g.lab("L_sj_done")

    assert gq_at + D <= qpos <= 2 * NS and qpos - D >= NS
    for pos in range(D, qpos):
        if pos == gq_at: side_issue()
        if pos == NS: g.stamp(2)
        g.wait(seq[pos - D]); issue(pos)
        if pos == gq_at + D - 1: side_process()
    g.stamp(3)
    nxt = [qpos]
    def slot():
        if nxt[0] < len(seq):
            g.wait(seq[nxt[0] - D]); issue(nxt[0]); nxt[0] += 1

    A("v_lshlrev_b32 v52, 4, v3")
    for gg in range(S): A(f"v_mov_b32 v{32+gg}, 0")
    for r in range(12): A(f"v_mov_b32 v{40+r}, 0")
    g.lab("L_qwait")
    A(f"ds_read_b32 v54, v{vZero} offset:{LDS_FLAG}")
    for s in range(3): A(f"ds_read_b128 {q4(20+4*s)}, v52 offset:{LDS_Q + 128*s}")
    A("s_waitcnt lgkmcnt(0)")
    A("v_cmp_eq_u32 vcc, 0, v54")
    A("s_cmp_eq_u64 vcc, 0")
    A("s_cbranch_scc1 L_qready")
    A("s_sleep 2")
    A("s_branch L_qwait")
    g.lab("L_qready")
    g.stamp(4)
    xs = [12 * (i + 1) // (X + 1) for i in range(X)] if X else []
    for sr in range(12):
        s, r = divmod(sr, 4)
        for _ in range(xs.count(sr)): slot()
        for gg in range(S):
            A(f"v_dot2c_f32_bf16 v{32+gg}, v{KB + (3*gg+s)*4 + r}, v{20+4*s+r}")
    SR = list(range(32, 32 + S))
    red8(SR)
    for r in SR: A(f"v_cvt_pk_bf16_f32 v{r}, v{r}, v{r}")
    for r in SR: A(f"v_and_b32 v{r}, 0xffff0000, v{r}")
    for r in SR: A(f"v_mul_f32 v{r}, s49, v{r}")
    for r in SR: A(f"v_cvt_pk_bf16_f32 v{r}, v{r}, v{r}")
    for r in SR: A(f"v_and_b32 v{r}, 0xffff0000, v{r}")
    A(f"v_max_f32 v52, v32, v33")
    rest = SR[2:]
    while len(rest) >= 2:
        A(f"v_max3_f32 v52, v52, v{rest[0]}, v{rest[1]}"); rest = rest[2:]
    if rest: A(f"v_max_f32 v52, v52, v{rest[0]}")
    red8groups(52, "v_max_f32")
    A("v_mul_f32 v52, s50, v52")
    slot()
    A("s_nop 0")
    A("v_readlane_b32 s36, v52, 63")
    A("s_nop 1")
    A(f"v_mov_b32 v{vM}, s36")
    for r in SR: A(f"v_fma_f32 v{r}, v{r}, s50, -v{vM}")
    for r in SR: A(f"v_exp_f32 v{r}, v{r}")
    A(f"v_add_f32 v{vL}, v32, v33")
    for r in SR[2:]: A(f"v_add_f32 v{vL}, v{vL}, v{r}")
    for r in SR: A(f"v_cvt_pk_bf16_f32 v{r}, v{r}, v{r}")
    g.stamp(5)

    wl = [("D", 0), ("D", 1)] + [(t, u) for t in range(3) for u in range(2)]
    def w_load(i):
        t, u = wl[i]
        if t == "D": g.vmem(f"global_load_dwordx4 {q4(WB+4*i)}, v{vWd}, s[20:21] offset:{u*128} nt", ("W", i))
        else: g.vmem(f"global_load_dwordx4 {q4(WB+4*i)}, v{vWo}, s[12:13] offset:{t*1280+u*128} nt", ("W", i))
    if wmode == "early":
        A("s_cmp_lt_u32 s32, 5"); A("s_cbranch_scc0 L_nowe")
        sv = list(g.vm)
        for i in range(8): w_load(i)
        g.vm = sv
        g.lab("L_nowe")
        w1 = 0
    for idx in range(NS):
        gg, s = divmod(idx, 3)
        a = 12 + 4 * (gg & 1)
        if s == 0:
            for r in range(4): A(f"v_and_b32 v{a+r}, v{32+gg}, v{4+r}")
        g.wait(("V", idx))
        issued = False
        if nxt[0] < len(seq) and nxt[0] <= NS + idx + D:
            issue(nxt[0]); nxt[0] += 1; issued = True
        if s == 0 and not issued: A("s_nop 0")
        A(f"v_mfma_f32_16x16x32_bf16 {q4(40+4*s)}, {q4(a)}, {q4(VB+4*idx)}, {q4(40+4*s)}")
    while nxt[0] < len(seq):
        issue(nxt[0]); nxt[0] += 1
    assert g.vm[-7:] == ["grab"] + seq[-6:], g.vm[-8:]
    g.stamp(6)
    if diag: A("s_mov_b32 s51, 0")

    def softmax_item(tag):
        A("v_add_f32 v37, v37, v38")
        A("v_add_f32 v37, v37, v39")
        red8([37])
        bf16r(37, 37)
        A("v_mul_f32 v37, s49, v37")
        bf16r(37, 37)
        A(f"v_fma_f32 v38, v37, s50, -v{vM}")
        A("v_cmp_lt_f32 vcc, 0, v38")
        A("s_cmp_eq_u64 vcc, 0")
        A(f"s_cbranch_scc1 L_nors{tag}")
        A("v_mov_b32 v52, v37")
        red8groups(52, "v_max_f32")
        A("v_mul_f32 v52, s50, v52")
        A("s_nop 0")
        A("v_readlane_b32 s36, v52, 63")
        A("s_nop 1")
        A(f"v_subrev_f32 v52, s36, v{vM}")
        A("v_exp_f32 v52, v52")
        A(f"v_mov_b32 v{vM}, s36")
        A(f"v_mul_f32 v{vL}, v{vL}, v52")
        for r in range(12): A(f"v_mul_f32 v{40+r}, v{40+r}, v52")
        A(f"v_fma_f32 v38, v37, s50, -v{vM}")
        g.lab(f"L_nors{tag}")
        A("v_exp_f32 v38, v38")
        A("s_nop 0")
        A(f"v_add_f32 v{vL}, v{vL}, v38")
        A("v_cvt_pk_bf16_f32 v38, v38, v38")
        for r in range(4): A(f"v_and_b32 v{12+r}, v38, v{4+r}")
    def pv_item():
        for s in range(3): A(f"v_mfma_f32_16x16x32_bf16 {q4(40+4*s)}, v[12:15], {q4(VD+4*s)}, {q4(40+4*s)}")

    g.lab("L_dyn")
    for s in range(3): A(f"v_mov_b32 v{37+s}, 0")
    A("s_waitcnt vmcnt(3)")
    A(f"v_readfirstlane_b32 s36, v{vG}")
    for r in range(4):
        for s in range(3): A(f"v_dot2c_f32_bf16 v{37+s}, v{KD+4*s+r}, v{20+4*s+r}")
    A(f"s_cmp_ge_u32 s36, {NDYN}"); A("s_cbranch_scc1 L_dyn_last")
    grab()
    A(f"s_add_u32 s36, s36, {64 * (S + 1)}")
    A("s_mul_i32 s36, s36, 3072")
    A("v_add_u32 v9, s36, v10")
    for s in range(3): A(f"global_load_dwordx4 {q4(KD+4*s)}, v9, s[6:7] offset:{128*s} nt")
    if diag: A("s_add_u32 s51, s51, 1")
    softmax_item("a")
    A("s_waitcnt vmcnt(4)")
    A("s_nop 0")
    pv_item()
    for s in range(3): A(f"global_load_dwordx4 {q4(VD+4*s)}, v9, s[8:9] offset:{128*s} nt")
    A("s_branch L_dyn")

    g.lab("L_dyn_last")
    g.vm = ["Vlast"]
    if w1:
        A("s_cmp_lt_u32 s32, 5"); A("s_cbranch_scc0 L_now1")
        for i in range(w1): w_load(i)
        g.lab("L_now1")
    A("s_nop 1")
    softmax_item("b")
    red8groups(vL, "v_add_f32")
    A("s_lshl_b32 s36, s32, 3")
    A("v_mov_b32 v52, s36")
    A("s_mov_b32 exec_lo, 0"); A("s_mov_b32 exec_hi, 0x80000000")
    A(f"ds_write_b64 v52, v[{vM}:{vL}] offset:{LDS_ML}")
    A("s_mov_b64 exec, -1")
    A("s_mov_b32 s52, 0x00ff00ff"); A("s_mov_b32 s53, 0x00ff00ff")
    A("s_cmp_lt_u32 s32, 5"); A("s_cbranch_scc0 L_tailB")

    def owrite():
        for s in range(3): A(f"ds_write_b128 v{vOw}, {q4(40+4*s)} offset:{LDS_O + 1024*s}")
    def oreduce(cls):
        A("s_waitcnt lgkmcnt(0)")
        A("s_barrier")
        A(f"ds_read_b64 v[50:51], v{vMLr} offset:{LDS_ML}")
        for t in range(3): A(f"ds_read2_b32 v[{44+2*t}:{45+2*t}], v{vOr[t]} offset1:160")
        if cls == "A":
            A(f"ds_read_b32 v{vHid}, v{vK4} offset:{LDS_HID}")
            A(f"ds_read_b64 v[{vG2}:{vG2+1}], v{vZero} offset:{LDS_G}")
        n = 2 if cls == "A" else 0
        A("s_waitcnt lgkmcnt(0)" if diag else f"s_waitcnt lgkmcnt({n+3})")
        A(f"v_max_f32_dpp v52, v50, v50 quad_perm:[1,0,3,2] {DPP}")
        A("s_nop 1")
        A(f"v_max_f32_dpp v52, v52, v52 quad_perm:[2,3,0,1] {DPP}")
        A("s_nop 1")
        A(f"v_max_f32_dpp v52, v52, v52 row_half_mirror {DPP}")
        A("v_and_b32 v52, 0xffffff00, v52")
        A("v_sub_f32 v50, v50, v52")
        A("v_exp_f32 v50, v50")
        A(f"s_waitcnt lgkmcnt({0 if diag else n})")
        for t in range(3): A(f"v_add_f32 v{40+t}, v{44+2*t}, v{45+2*t}")
        A("v_mul_f32 v43, v51, v50")
        for t in range(3): A(f"v_mul_f32 v{40+t}, v{40+t}, v50")
        red8([43, 40, 41, 42])
        A("v_cndmask_b32 v43, v43, v52, s[52:53]")
        for r in range(4): A(f"v_bfi_b32 v{40+r}, v8, s34, v{40+r}")
        A("s_mov_b32 exec_lo, 0x01010101"); A("s_mov_b32 exec_hi, 0x01010101")
        g.vmem(f"global_store_dwordx4 v{vOPst}, v[40:43], s[42:43] sc1", "opst")
        A("s_mov_b64 exec, -1")

    g.wait("Vlast")
    pv_item()
    nw = 0
    if wmode == "pv":
        for i in range(w1, 8): w_load(i); nw += 1
    g.stamp(7)
    if nw < 7: A(f"s_nop {6 - nw}")
    owrite()
    oreduce("A")
    g.stamp(8)
    if wmode == "afterpub" or pubbar: A("s_barrier")
    if wmode == "afterpub":
        for i in range(w1, 8): w_load(i)
    def ogather():
        A(f"global_load_dwordx4 v[32:35], v{vGat}, s[42:43] sc1")
    ogather(); g.vm += ["og"]
    A("s_waitcnt lgkmcnt(0)")
    for r in range(4): A(f"v_and_b32 v{12+r}, v{vHid}, v{4+r}")
    if wmode != "early": g.wait(("W", 1))
    else: A("s_nop 0")
    A("s_nop 0")
    A(f"v_mfma_f32_16x16x32_bf16 v[44:47], v[12:15], {q4(WB)}, 0")
    A(f"v_mfma_f32_16x16x32_bf16 v[48:51], v[12:15], {q4(WB+4)}, 0")
    A("s_nop 7")
    for r in range(4): A(f"v_permlane32_swap_b32 v{44+r}, v{48+r}")
    for r in range(4): A(f"v_add_f32_dpp v{44+r}, v{48+r}, v{44+r} row_ror:8 {DPP}")
    for r in range(4): A(f"v_mul_f32 v{56+r}, v{vG2+1}, v{44+r}")
    A("s_waitcnt vmcnt(0)")
    g.lab("L_o_chk")
    tagcheck([35, 32, 33, 34], 52)
    retry("o", ogather)
    g.stamp(9)
    A(f"v_mov_b32_dpp v38, v35 row_ror:8 {DPP}")
    A("v_cndmask_b32 v37, v38, v35, s[52:53]")
    A("v_cndmask_b32 v36, v35, v38, s[52:53]")
    A("s_nop 0")
    A(f"v_max_f32_dpp v38, v37, v37 quad_perm:[1,0,3,2] {DPP}")
    A("s_nop 1")
    A(f"v_max_f32_dpp v38, v38, v38 quad_perm:[2,3,0,1] {DPP}")
    A("s_nop 1")
    A(f"v_max_f32_dpp v38, v38, v38 row_half_mirror {DPP}")
    A("v_sub_f32 v37, v37, v38")
    A("v_exp_f32 v37, v37")
    A("s_nop 0")
    for r in (36, 32, 33, 34): A(f"v_mul_f32 v{r}, v{r}, v37")
    red8([36, 32, 33, 34])
    A("v_rcp_f32 v36, v36")
    A("s_nop 0")
    for t in range(3): A(f"v_mul_f32 v{32+t}, v{32+t}, v36")
    for t in range(3): A(f"v_cvt_pk_bf16_f32 v{32+t}, v{32+t}, v{32+t}")
    areg = [12, 16, 36]
    for t in range(3):
        for r in range(4): A(f"v_and_b32 v{areg[t]+r}, v{32+t}, v{4+r}")
    for t in range(3):
        for u in range(2):
            c = "0" if t == 0 else q4(44+4*u)
            A(f"v_mfma_f32_16x16x32_bf16 {q4(44+4*u)}, {q4(areg[t])}, {q4(WB+4*(2+2*t+u))}, {c}")
    A("s_nop 7")
    for r in range(4): A(f"v_permlane32_swap_b32 v{44+r}, v{48+r}")
    for r in range(4): A(f"v_add_f32_dpp v{44+r}, v{48+r}, v{44+r} row_ror:8 {DPP}")
    for r in range(4): A(f"v_fma_f32 v{44+r}, v{44+r}, v{vG2}, v{56+r}")
    for r in range(4): A(f"v_bfi_b32 v{44+r}, v8, s34, v{44+r}")
    A("s_mov_b32 exec_lo, 0x00ff00ff"); A("s_mov_b32 exec_hi, 0x00ff00ff")
    A(f"global_store_dwordx4 v{vFP}, v[44:47], s[28:29] sc1")
    A("s_mov_b64 exec, -1")
    g.stamp(10)
    A("s_barrier")
    A("s_branch L_exit")

    g.lab("L_tailB")
    A("s_waitcnt vmcnt(0)")
    pv_item()
    g.stamp(7)
    A("s_nop 6")
    owrite()
    oreduce("B")
    g.stamp(8)
    if wmode == "afterpub" or pubbar: A("s_barrier")
    A("s_cmp_lt_u32 s32, 7"); A("s_cbranch_scc1 L_exit")
    A("s_cmp_ge_u32 s2, 80"); A("s_cbranch_scc1 L_exit")
    A("s_lshl_b32 s36, s2, 13"); A(f"s_add_u32 s36, s36, {FP_OFF}")
    A("s_add_u32 s40, s28, s36"); A("s_addc_u32 s41, s29, 0")
    A(f"v_add_u32 v23, 4096, v{vL16}")
    A("s_lshr_b32 s36, s2, 4"); A("s_lshl_b32 s36, s36, 7")
    A("s_bfe_u32 s37, s2, 0x10003"); A("s_lshl_b32 s37, s37, 6"); A("s_add_u32 s36, s36, s37")
    A("s_and_b32 s37, s2, 3"); A("s_lshl_b32 s37, s37, 4"); A("s_add_u32 s36, s36, s37")
    A("s_bfe_u32 s37, s2, 0x10002"); A("s_lshl_b32 s37, s37, 2"); A("s_add_u32 s36, s36, s37")
    A("v_and_b32 v52, 1, v1"); A("v_lshlrev_b32 v52, 3, v52")
    A("v_lshrrev_b32 v53, 4, v1")
    A("v_add3_u32 v24, v52, v53, s36")
    A("v_lshlrev_b32 v24, 1, v24")
    A("s_barrier")
    g.stamp(9)
    def fgather():
        for k in range(8): A(f"global_load_dwordx4 {q4(KB+4*k)}, v23, s[40:41] offset:{k*1024-4096} sc1")
    fgather()
    A("s_waitcnt vmcnt(0)")
    g.lab("L_f_chk")
    tagcheck(range(KB, KB + 32), 52, pair=True)
    retry("f", fgather, masked=True)
    g.stamp(10)
    for st in (16, 8, 4):
        for r in range(st): A(f"v_add_f32 v{KB+r}, v{KB+r}, v{KB+st+r}")
    A("s_nop 0")
    A(f"v_permlane32_swap_b32 v{KB}, v{KB+2}")
    A(f"v_permlane32_swap_b32 v{KB+1}, v{KB+3}")
    A(f"v_add_f32 v{KB}, v{KB}, v{KB+2}")
    A(f"v_add_f32 v{KB+1}, v{KB+1}, v{KB+3}")
    A("s_nop 1")
    A(f"v_permlane16_swap_b32 v{KB}, v{KB+1}")
    A(f"v_add_f32 v{KB}, v{KB}, v{KB+1}")
    for mode in ("row_ror:8", "row_ror:4", "row_ror:2"):
        A("s_nop 1"); A(f"v_add_f32_dpp v{KB}, v{KB}, v{KB} {mode} {DPP}")
    A(f"v_cvt_pk_bf16_f32 v{KB}, v{KB}, v{KB}")
    A("s_mov_b32 exec_lo, 0x00030003"); A("s_mov_b32 exec_hi, 0x00030003")
    A(f"global_store_short v24, v{KB}, s[24:25]")
    A("s_cmp_lg_u32 s2, 0"); A("s_cbranch_scc1 L_exit")
    A("s_mov_b64 exec, 1")
    A("v_mov_b32 v53, s33")
    A(f"global_store_dword v{vZero}, v53, s[28:29]")
    if leak:
        i, j, mult = leak
        g.stamp(11)
        A("s_waitcnt lgkmcnt(0)")
        A(f"s_sub_u32 s36, s{64+2*j}, s{64+2*i}")
        A(f"s_mul_i32 s36, s36, {mult}")
        A("s_min_u32 s36, s36, 100000")
        g.lab("L_leak")
        A("s_memrealtime s[56:57]")
        A("s_waitcnt lgkmcnt(0)")
        A("s_sub_u32 s37, s56, s86")
        A("s_cmp_lt_u32 s37, s36")
        A("s_cbranch_scc1 L_leak")
    g.lab("L_exit")
    if diag and not leak:
        g.stamp(11)
        A("s_mov_b64 exec, 1")
        A("s_lshl_b32 s36, s2, 3"); A("s_add_u32 s36, s36, s32"); A("s_lshl_b32 s36, s36, 7")
        A(f"s_add_u32 s36, s36, {STAMP_OFF}")
        if wsbase: A(f"s_sub_u32 s28, s28, {wsbase}"); A("s_subb_u32 s29, s29, 0")
        A("v_mov_b32 v52, s36")
        A("s_getreg_b32 s37, hwreg(HW_REG_XCC_ID)")
        A("s_waitcnt lgkmcnt(0)")
        A("s_mov_b32 s88, s46"); A("s_mov_b32 s89, s37"); A("s_mov_b32 s90, s51")
        for k in range(8):
            for r in range(4): A(f"v_mov_b32 v{KB+4*k+r}, s{64+4*k+r}")
            A(f"global_store_dwordx4 v52, {q4(KB+4*k)}, s[28:29] offset:{16*k}")
    g.lab("L_end")
    A("s_endpgm")
    L.append('.section .rodata,"a"'); L.append(".p2align 6"); L.append(f".amdhsa_kernel {KN}")
    L.append("  .amdhsa_next_free_vgpr 256")
    L.append("  .amdhsa_next_free_sgpr 96")
    L.append("  .amdhsa_accum_offset 256")
    L.append("  .amdhsa_group_segment_fixed_size 0"); L.append("  .amdhsa_kernarg_size 104")
    L.append("  .amdhsa_user_sgpr_count 2"); L.append("  .amdhsa_user_sgpr_kernarg_segment_ptr 1")
    L.append("  .amdhsa_system_sgpr_workgroup_id_x 1")
    L.append("  .amdhsa_float_denorm_mode_32 3")
    L.append(".end_amdhsa_kernel")
    return "\n".join(L) + "\n"

if __name__ == "__main__":
    import argparse, hazard, ast
    ap = argparse.ArgumentParser()
    ap.add_argument("-o", default="gated_mix__sliding_block_cached__geglu_ffn__decode.s")
    ap.add_argument("kv", nargs="*")
    a = ap.parse_args()
    kw = {}
    for x in a.kv:
        k, v = x.split("="); kw[k] = ast.literal_eval(v)
    t = gen(**kw)
    open(a.o, "w").write(t)
    pr = hazard.check(t)
    for x in pr: print(x)
    print(len(pr), "hazard findings")
```

```python
import sys, struct
KN = "gated_mix__sliding_block_cached__geglu_ffn__decode_kernel"

QP_OFF = 4096
HDR_OFF = QP_OFF + 32 * 10240
OP_OFF = HDR_OFF + 32 * 1024
FP_OFF = OP_OFF + 192 * 1024
STAMP_OFF = 1 << 22

LDS_Q = 0
LDS_G = 384
LDS_FLAG = 392
LDS_F = 400
LDS_ML = 432
LDS_HID = 512
LDS_O = 768
OSTR = 3072 + 16
LDS_BYTES = LDS_O + 8 * OSTR

def f2u(f): return struct.unpack("<I", struct.pack("<f", f))[0]
LOG2E = 1.4426950408889634

HEADER = open("gated_mix__sliding_block_cached__geglu_ffn__decode.s.ref").read().split("; Override")[0]

class G:
    def __init__(s, diag=False):
        s.L = []; s.vm = []; s.diag = diag
    def A(s, x): s.L.append("    " + x)
    def lab(s, x): s.L.append(x + ":")
    def c(s, x): s.L.append("    ; " + x)
    def vmem(s, x, tag=None):
        s.A(x); s.vm.append(tag)
    def wait(s, tag):
        idx = max(i for i, t in enumerate(s.vm) if t == tag)
        n = len(s.vm) - 1 - idx
        s.A(f"s_waitcnt vmcnt({n})")
    def stamp(s, i):
        if s.diag: s.A(f"s_memrealtime s[{64+2*i}:{65+2*i}]")

def q4(b): return f"v[{b}:{b+3}]"
DPP = "row_mask:0xf bank_mask:0xf"

def gen(D=4, diag=False, spin=200000, prefetch_code=True, q1pos=21, wrate=1, rot=37, leak=None, psleep=8, wsbase=0, pfirst=False, wearly=0, opl='kp', fpl=32, osleep=0, cmap=True):
    g = G(diag); A = g.A
    L = g.L
    B1 = 64; B2 = 112; WB = B1
    vZero, vOne = 60, 61
    vL16, vOw, vF4, vK4 = 160, 161, 162, 163
    vWo, vWd, vOPst, vGat, vFP, vHid = 20, 21, 22, 23, 24, 25
    vG2 = 26
    vOr = 28
    FSH = {32: 10, 128: 12}[fpl]
    L.append(HEADER.rstrip())
    L.append(f"; @launch grid=(256,1,1) block=(768,1,1) lds={LDS_BYTES}")
    L.append('.amdgcn_target "amdgcn-amd-amdhsa--gfx950"')
    L.append(".text"); L.append(f".globl {KN}"); L.append(".p2align 8"); L.append(f".type {KN},@function")
    g.lab(KN)
    A("s_cmp_ge_u32 s2, 256"); A("s_cbranch_scc1 L_end")
    A("s_load_dwordx16 s[4:19], s[0:1], 0")
    A("s_load_dwordx8 s[20:27], s[0:1], 64")
    A("s_load_dwordx2 s[28:29], s[0:1], 96")
    g.stamp(0)
    A("v_lshrrev_b32 v52, 6, v0")
    A("v_and_b32 v1, 63, v0")
    A("v_readfirstlane_b32 s32, v52")
    A("v_lshrrev_b32 v2, 3, v1")
    A("v_and_b32 v3, 7, v1")
    A(f"v_mov_b32 v{vZero}, 0")
    A("s_lshr_b32 s30, s2, 3")
    A("s_and_b32 s31, s2, 7")
    if cmap:
        A("s_mul_i32 s51, s30, 205"); A("s_lshr_b32 s51, s51, 11")
        A("s_mul_i32 s52, s51, 10"); A("s_sub_u32 s52, s30, s52")
        A("s_mul_i32 s36, s31, 3"); A("s_add_u32 s51, s51, s36")
    else:
        A("s_mul_i32 s51, s2, 205"); A("s_lshr_b32 s51, s51, 11")
        A("s_mul_i32 s52, s51, 10"); A("s_sub_u32 s52, s2, s52")
    A("s_min_u32 s51, s51, 23")
    A("s_cmp_lt_u32 s32, 4")
    A("s_cbranch_scc1 L_service")

    def masks():
        A("v_and_b32 v52, 1, v1")
        A("v_mov_b32 v53, 0xffff")
        A("v_lshlrev_b32 v52, 4, v52")
        A("v_lshlrev_b32 v53, v52, v53")
        A("v_lshrrev_b32 v52, 1, v3")
        for r in range(4):
            A(f"v_cmp_eq_u32 vcc, {r}, v52")
            A("s_nop 1")
            A(f"v_cndmask_b32 v{4+r}, 0, v53, vcc")
        A("v_mov_b32 v8, 0xff")
        A(f"v_mov_b32 v{vOne}, 1")
        A(f"s_mov_b32 s46, {spin}")
        A(f"v_lshlrev_b32 v{vL16}, 4, v1")
        A(f"v_lshlrev_b32 v{vF4}, 2, v3")
        A(f"v_lshlrev_b32 v{vK4}, 2, v2")

    def retry(name, reload_fn, masked=False, sleep=0):
        A("s_cmp_eq_u64 vcc, 0")
        A(f"s_cbranch_scc1 L_{name}_ok")
        A("s_sub_u32 s46, s46, 1"); A("s_cbranch_scc1 L_%s_ok" % name)
        if masked: A("s_mov_b64 exec, vcc")
        if sleep: A(f"s_sleep {sleep}")
        reload_fn()
        A("s_waitcnt vmcnt(0)")
        A(f"s_branch L_{name}_chk")
        g.lab(f"L_{name}_ok")
        if masked: A("s_mov_b64 exec, -1")

    def tagcheck(rlist, tmp, pair=False):
        for r in rlist: A(f"v_xor_b32 v{r}, s34, v{r}")
        rl = list(rlist)
        if len(rl) == 1: A(f"v_mov_b32 v{tmp}, v{rl[0]}"); rl = []
        elif len(rl) == 2: A(f"v_or_b32 v{tmp}, v{rl[0]}, v{rl[1]}"); rl = []
        else: A(f"v_or3_b32 v{tmp}, v{rl[0]}, v{rl[1]}, v{rl[2]}"); rl = rl[3:]
        while len(rl) >= 2:
            A(f"v_or3_b32 v{tmp}, v{tmp}, v{rl[0]}, v{rl[1]}"); rl = rl[2:]
        if rl: A(f"v_or_b32 v{tmp}, v{tmp}, v{rl[0]}")
        if pair:
            A("s_nop 1")
            A(f"v_or_b32_dpp v{tmp}, v{tmp}, v{tmp} quad_perm:[1,0,3,2] {DPP}")
        A(f"v_and_b32 v{tmp}, v8, v{tmp}")
        A(f"v_cmp_ne_u32 vcc, 0, v{tmp}")

    def red8(regs, op="v_add_f32"):
        for mode in ("quad_perm:[1,0,3,2]", "quad_perm:[2,3,0,1]", "row_half_mirror"):
            if len(regs) < 3: A(f"s_nop {2 - len(regs)}")
            for r in regs: A(f"{op}_dpp v{r}, v{r}, v{r} {mode} {DPP}")

    def bf16r(dst, src):
        A(f"v_cvt_pk_bf16_f32 v{dst}, v{src}, v{src}")
        A(f"v_and_b32 v{dst}, 0xffff0000, v{dst}")

    def red64(r, op):
        for mode in ("quad_perm:[1,0,3,2]", "quad_perm:[2,3,0,1]", "row_half_mirror", "row_mirror"):
            A("s_nop 1"); A(f"{op}_dpp v{r}, v{r}, v{r} {mode} {DPP}")
        A("s_nop 1"); A(f"{op}_dpp v{r}, v{r}, v{r} row_bcast:15 row_mask:0xa bank_mask:0xf")
        A("s_nop 1"); A(f"{op}_dpp v{r}, v{r}, v{r} row_bcast:31 row_mask:0xc bank_mask:0xf")

    def red8groups(r, op):
        A("s_nop 1"); A(f"{op}_dpp v{r}, v{r}, v{r} row_ror:8 {DPP}")
        A("s_nop 1"); A(f"{op}_dpp v{r}, v{r}, v{r} row_bcast:15 row_mask:0xa bank_mask:0xf")
        A("s_nop 1"); A(f"{op}_dpp v{r}, v{r}, v{r} row_bcast:31 row_mask:0xc bank_mask:0xf")

    def ws_epoch():
        if wsbase: A(f"s_add_u32 s28, s28, {wsbase}"); A("s_addc_u32 s29, s29, 0")
        A("s_load_dword s33, s[28:29], 0")

    A("s_sub_u32 s32, s32, 4")
    A("v_mul_u32_u24 v10, 384, v2")
    A("v_lshl_add_u32 v10, v3, 4, v10")
    A("s_lshl_b32 s36, s31, 3"); A("s_add_u32 s36, s36, s32")
    A(f"s_mul_i32 s62, s30, {rot}")
    A("s_add_u32 s62, s62, s36")
    A("s_mul_i32 s35, s30, 12582912")
    A(f"s_add_u32 s35, s35, {28672*384}")
    seq = [("K", t) for t in range(24)] + [("V", t) for t in range(24)]
    cur = [None]
    def item_addr(item):
        A(f"s_add_u32 s36, s62, {64 * item}"); A("s_and_b32 s36, s36, 511"); A("s_mul_i32 s36, s36, 3072")
        A("v_add_u32 v9, s36, v10"); cur[0] = item
    def sreg(idx): return B1 + 4 * idx
    def issue(pos):
        kind, idx = seq[pos]
        item, s = divmod(idx, 3)
        if cur[0] != item: item_addr(item)
        base = "s[6:7]" if kind == "K" else "s[8:9]"
        g.vmem(f"global_load_dwordx4 {q4(sreg(idx))}, v9, {base} offset:{s*128} nt", (kind, idx))
    item_addr(0)
    A("s_waitcnt lgkmcnt(0)")
    A("s_add_u32 s6, s6, s35"); A("s_addc_u32 s7, s7, 0")
    if pfirst: A("s_barrier")
    for t in range(D): issue(t)
    A("s_add_u32 s8, s8, s35"); A("s_addc_u32 s9, s9, 0")
    ws_epoch()
    if not pfirst: A("s_barrier")
    masks()
    A(f"s_mov_b32 s49, {f2u(192 ** -0.5):#x}")
    A(f"s_mov_b32 s50, {f2u(LOG2E):#x}")
    A(f"s_mul_i32 s36, s32, {OSTR}")
    A(f"v_add_u32 v{vOw}, s36, v{vL16}")
    A("s_lshl_b32 s53, s51, 3"); A("s_add_u32 s53, s53, s32")
    A("s_lshl_b32 s37, s52, 7")
    A("s_mul_i32 s36, s53, 40960"); A("s_add_u32 s36, s36, s37")
    A("s_add_u32 s12, s12, s36"); A("s_addc_u32 s13, s13, 0")
    A("s_mul_i32 s36, s53, 10240"); A("s_add_u32 s36, s36, s37")
    A("s_add_u32 s20, s20, s36"); A("s_addc_u32 s21, s21, 0")
    A(f"s_add_u32 s42, s28, {OP_OFF}"); A("s_addc_u32 s43, s29, 0")
    for gg in range(8): A(f"v_mov_b32 v{32+gg}, 0")
    for r in range(12): A(f"v_mov_b32 v{40+r}, 0")
    g.stamp(1)
    nxt = [D]
    def slot(limit=48):
        if nxt[0] < limit:
            g.wait(seq[nxt[0] - D]); issue(nxt[0]); nxt[0] += 1
    assert 12 + D <= q1pos <= 24
    while nxt[0] < q1pos: slot()
    g.stamp(2)
    A("v_lshlrev_b32 v52, 4, v3")
    g.lab("L_qwait")
    A(f"ds_read_b32 v54, v{vZero} offset:{LDS_FLAG}")
    for s in range(3): A(f"ds_read_b128 {q4(20+4*s)}, v52 offset:{LDS_Q + 128*s}")
    A("s_waitcnt lgkmcnt(0)")
    A("v_cmp_eq_u32 vcc, 0, v54")
    A("s_cmp_eq_u64 vcc, 0")
    A("s_cbranch_scc1 L_qready")
    A("s_sleep 2")
    A("s_branch L_qwait")
    g.lab("L_qready")
    A("s_add_u32 s33, s33, 1"); A("s_and_b32 s34, s33, 0xff")
    g.stamp(3)
    def qk(groups, nslots, limit):
        at = [12 * (i + 1) // (nslots + 1) for i in range(nslots)]
        for sr in range(12):
            s, r = divmod(sr, 4)
            for _ in range(at.count(sr)): slot(limit)
            for gg in groups:
                A(f"v_dot2c_f32_bf16 v{32+gg}, v{sreg(3*gg+s) + r}, v{20+4*s+r}")
    qk(range(4), 1, 24)
    while nxt[0] < 24 + D: slot()
    g.stamp(4)
    qk(range(4, 8), 1, 36)
    SR = list(range(32, 40))
    red8(SR)
    for p in range(4): A(f"v_cvt_pk_bf16_f32 v{52+p}, v{32+2*p}, v{33+2*p}")
    for p in range(4):
        A(f"v_lshlrev_b32 v{32+2*p}, 16, v{52+p}"); A(f"v_and_b32 v{33+2*p}, 0xffff0000, v{52+p}")
    for r in SR: A(f"v_mul_f32 v{r}, s49, v{r}")
    for p in range(4): A(f"v_cvt_pk_bf16_f32 v{52+p}, v{32+2*p}, v{33+2*p}")
    for p in range(4):
        A(f"v_lshlrev_b32 v{32+2*p}, 16, v{52+p}"); A(f"v_and_b32 v{33+2*p}, 0xffff0000, v{52+p}")
    slot()
    A("v_max3_f32 v52, v32, v33, v34"); A("v_max3_f32 v53, v35, v36, v37")
    A("v_max3_f32 v52, v52, v38, v39"); A("v_max_f32 v52, v52, v53")
    red8groups(52, "v_max_f32")
    A("v_mul_f32 v52, s50, v52")
    A("s_nop 0")
    A("v_readlane_b32 s37, v52, 63")
    A("s_nop 1")
    A("v_mov_b32 v56, s37")
    for r in SR: A(f"v_fma_f32 v{r}, v{r}, s50, -v56")
    for r in SR: A(f"v_exp_f32 v{r}, v{r}")
    A("v_add_f32 v52, v32, v33"); A("v_add_f32 v53, v34, v35"); A("v_add_f32 v54, v36, v37")
    A("v_add_f32 v57, v38, v39")
    A("v_add_f32 v52, v52, v53"); A("v_add_f32 v57, v57, v54"); A("v_add_f32 v57, v57, v52")
    for r in SR: A(f"v_cvt_pk_bf16_f32 v{r}, v{r}, v{r}")
    red8groups(57, "v_add_f32")
    A("s_lshl_b32 s36, s32, 3")
    A("v_mov_b32 v52, s36")
    A("s_mov_b32 exec_lo, 0"); A("s_mov_b32 exec_hi, 0x80000000")
    A(f"ds_write_b64 v52, v[56:57] offset:{LDS_ML}")
    A(f"ds_add_u32 v{vZero}, v{vOne} offset:{LDS_FLAG+4}")
    A("s_mov_b64 exec, -1")
    g.stamp(5)
    slot()
    A(f"v_mul_u32_u24 v{vWd}, 1280, v2")
    A(f"v_lshlrev_b32 v{vWo}, 2, v{vWd}")
    A(f"v_lshl_add_u32 v{vWd}, v3, 4, v{vWd}")
    A(f"v_lshl_add_u32 v{vWo}, v3, 4, v{vWo}")
    A("s_lshr_b32 s36, s32, 1"); A("s_lshl_b32 s36, s36, 10")
    A("s_and_b32 s37, s32, 1"); A("s_lshl_b32 s37, s37, 6"); A("s_add_u32 s36, s36, s37")
    A(f"v_mul_u32_u24 v{vOr}, {OSTR}, v3")
    A("v_lshrrev_b32 v52, 1, v2"); A(f"v_lshl_add_u32 v{vOr}, v52, 4, v{vOr}")
    A("v_and_b32 v53, 1, v2"); A(f"v_lshl_add_u32 v{vOr}, v53, 8, v{vOr}")
    A(f"v_add_u32 v{vOr}, s36, v{vOr}")
    A("s_mul_i32 s36, s30, 6"); A("s_add_u32 s36, s36, s32"); A("s_lshl_b32 s36, s36, 10")
    if opl == "kp":
        A("s_lshl_b32 s37, s31, 4"); A("s_add_u32 s36, s36, s37")
        A(f"v_lshl_add_u32 v{vOPst}, v2, 7, s36")
        A("s_lshl_b32 s36, s53, 10")
        A(f"v_add_u32 v{vGat}, s36, v{vL16}")
    else:
        A("s_lshl_b32 s37, s31, 7"); A("s_add_u32 s36, s36, s37")
        A(f"v_lshl_add_u32 v{vOPst}, v2, 4, s36")
        A("s_lshl_b32 s36, s53, 10")
        A(f"v_lshl_add_u32 v{vGat}, v2, 4, s36")
        A(f"v_lshl_add_u32 v{vGat}, v3, 7, v{vGat}")
    A("s_lshl_b32 s36, s52, 3"); A("s_lshl_b32 s37, s32, 2"); A("s_add_u32 s36, s36, s37"); A(f"s_lshl_b32 s36, s36, {FSH}")
    A(f"s_lshl_b32 s37, s51, {FSH-5}"); A("s_add_u32 s36, s36, s37"); A(f"s_add_u32 s36, s36, {FP_OFF}")
    A(f"v_lshl_add_u32 v{vFP}, v52, {FSH}, s36")
    A(f"v_lshl_add_u32 v{vFP}, v53, 4, v{vFP}")
    A("s_lshl_b32 s36, s32, 5")
    A(f"v_add_u32 v{vK4}, s36, v{vK4}")

    NWL = 5
    def w_load(i):
        if i == 0: g.vmem(f"global_load_dwordx4 {q4(WB)}, v{vWd}, s[20:21] nt", ("W", 0))
        else: g.vmem(f"global_load_dwordx4 {q4(WB+4*i)}, v{vWo}, s[12:13] offset:{(i-1)*1280} nt", ("W", i))
    def pv_step(idx, cls, st):
        gg, s = divmod(idx, 3)
        a = 12 + 4 * (gg & 1)
        if s == 0:
            for r in range(4): A(f"v_and_b32 v{a+r}, v{32+gg}, v{4+r}")
        g.wait(("V", idx))
        issued = False
        if nxt[0] < 48:
            if nxt[0] <= 24 + idx + D:
                issue(nxt[0]); nxt[0] += 1; issued = True
        elif cls == "A":
            assert idx >= 8
            for _ in range(wrate):
                if st["w"] < NWL:
                    w_load(st["w"]); st["w"] += 1; issued = True
        if s == 0 and not issued: A("s_nop 0")
        A(f"v_mfma_f32_16x16x32_bf16 {q4(40+4*s)}, {q4(a)}, {q4(sreg(idx))}, {q4(40+4*s)}")
    idx = 0
    while nxt[0] < 48:
        pv_step(idx, "C", None); idx += 1
    g.stamp(6)
    A("s_cmp_lt_u32 s2, 240"); A("s_cbranch_scc0 L_tailB")
    vm_save = list(g.vm)

    def quad_reduce(scale):
        A(f"ds_read_b128 v[40:43], v{vOr} offset:{LDS_O}")
        A(f"ds_read_b128 v[44:47], v{vOr} offset:{LDS_O + 640}")
        if scale: A(f"ds_read_b32 v50, v{vF4} offset:{LDS_F}")
        A("s_waitcnt lgkmcnt(0)")
        for r in range(4): A(f"v_add_f32 v{40+r}, v{40+r}, v{44+r}")
        if scale:
            for r in range(4): A(f"v_mul_f32 v{40+r}, v{40+r}, v50")
        red8([40, 41, 42, 43])
        for r in range(4): A(f"v_bfi_b32 v{40+r}, v8, s34, v{40+r}")
        A("s_mov_b32 exec_lo, 0x01010101"); A("s_mov_b32 exec_hi, 0x01010101")
    def oreduce(cls):
        for s in range(3): A(f"ds_write_b128 v{vOw}, {q4(40+4*s)} offset:{LDS_O + 1024*s}")
        A("s_cmp_lt_u32 s32, 6")
        A("s_waitcnt lgkmcnt(0)")
        A("s_barrier")
        A(f"s_cbranch_scc0 L_nopub{cls}")
        quad_reduce(True)
        A(f"global_store_dwordx4 v{vOPst}, v[40:43], s[42:43] sc1")
        A("s_mov_b64 exec, -1")
        g.lab(f"L_nopub{cls}")
        g.stamp(8)
        A("s_barrier")

    st = dict(w=0)
    for i in range(wearly): w_load(i); st["w"] += 1
    for i in range(idx, 24): pv_step(i, "A", st)
    nw = 0
    while st["w"] < NWL:
        w_load(st["w"]); st["w"] += 1; nw += 1
    g.stamp(7)
    if nw < 6: A(f"s_nop {5 - nw}")
    oreduce("A")
    def ogather(): A(f"global_load_dwordx4 v[32:35], v{vGat}, s[42:43] sc1")
    ogather(); g.vm += ["og"]
    A(f"ds_read_b32 v{vHid}, v{vK4} offset:{LDS_HID}")
    A(f"ds_read_b64 v[{vG2}:{vG2+1}], v{vZero} offset:{LDS_G}")
    A("s_waitcnt lgkmcnt(0)")
    for r in range(4): A(f"v_and_b32 v{12+r}, v{vHid}, v{4+r}")
    g.wait(("W", 0))
    A("s_nop 0")
    A(f"v_mfma_f32_16x16x32_bf16 v[44:47], v[12:15], {q4(WB)}, 0")
    A("s_nop 7")
    for r in range(4): A(f"v_mul_f32 v{56+r}, v{vG2+1}, v{44+r}")
    A("s_waitcnt vmcnt(0)")
    g.lab("L_o_chk")
    tagcheck([32, 33, 34, 35], 52)
    retry("o", ogather, sleep=osleep)
    g.stamp(9)
    red8([32, 33, 34, 35])
    for t in range(4): A(f"v_cvt_pk_bf16_f32 v{32+t}, v{32+t}, v{32+t}")
    areg = [12, 16, 36, 48]
    for t in range(4):
        for r in range(4): A(f"v_and_b32 v{areg[t]+r}, v{32+t}, v{4+r}")
        if t >= 1:
            A(f"v_mfma_f32_16x16x32_bf16 v[44:47], {q4(areg[t-1])}, {q4(WB+4*t)}, {'0' if t == 1 else 'v[44:47]'}")
    A("s_nop 0")
    A(f"v_mfma_f32_16x16x32_bf16 v[44:47], {q4(areg[3])}, {q4(WB+16)}, v[44:47]")
    A("s_nop 7")
    for r in range(4): A(f"v_fma_f32 v{44+r}, v{44+r}, v{vG2}, v{56+r}")
    A(f"ds_write_b128 v{vOw}, v[44:47] offset:{LDS_O}")
    A("s_cmp_lt_u32 s32, 2")
    A("s_waitcnt lgkmcnt(0)")
    A("s_barrier")
    A("s_cbranch_scc0 L_exitS")
    quad_reduce(False)
    A(f"global_store_dwordx4 v{vFP}, v[40:43], s[28:29] sc1")
    g.stamp(10)
    A("s_branch L_exitS")

    g.lab("L_tailB")
    g.vm = vm_save
    for i in range(idx, 24): pv_step(i, "B", None)
    g.stamp(7)
    A("s_nop 5")
    oreduce("B")
    if diag: A("s_barrier")
    A("s_cmp_lt_u32 s32, 5"); A("s_cbranch_scc0 L_exitS")
    A("s_sub_u32 s36, s2, 240"); A("s_mul_i32 s36, s36, 5"); A("s_add_u32 s38, s36, s32")
    A(f"s_lshl_b32 s36, s38, {FSH}"); A(f"s_add_u32 s36, s36, {FP_OFF}")
    A("v_lshrrev_b32 v52, 1, v1"); A(f"v_lshl_add_u32 v{vGat}, v52, {FSH-5}, s36")
    A("v_and_b32 v52, 1, v1"); A(f"v_lshl_add_u32 v{vGat}, v52, 4, v{vGat}")
    A("v_and_b32 v52, 1, v1"); A("v_lshlrev_b32 v52, 2, v52")
    A("v_lshrrev_b32 v53, 4, v1")
    A("s_lshl_b32 s36, s38, 3")
    A(f"v_add3_u32 v{vFP}, v52, v53, s36")
    A(f"v_lshlrev_b32 v{vFP}, 1, v{vFP}")
    for r in range(4): A(f"v_mov_b32 v{32+r}, 0")
    A("s_mov_b32 exec_hi, 0xffff")
    def fgather(): A(f"global_load_dwordx4 v[32:35], v{vGat}, s[28:29] sc1")
    g.stamp(9)
    fgather()
    A("s_waitcnt vmcnt(0)")
    g.lab("L_f_chk")
    tagcheck([32, 33, 34, 35], 52)
    retry("f", fgather)
    A("s_mov_b64 exec, -1")
    g.stamp(10)
    A("v_permlane32_swap_b32 v32, v34")
    A("v_permlane32_swap_b32 v33, v35")
    A("v_add_f32 v32, v32, v34")
    A("v_add_f32 v33, v33, v35")
    A("s_nop 1")
    A("v_permlane16_swap_b32 v32, v33")
    A("v_add_f32 v32, v32, v33")
    for mode in ("row_ror:8", "row_ror:4", "row_ror:2"):
        A("s_nop 1"); A(f"v_add_f32_dpp v32, v32, v32 {mode} {DPP}")
    A("v_cvt_pk_bf16_f32 v32, v32, v32")
    A("s_mov_b32 exec_lo, 0x00030003"); A("s_mov_b32 exec_hi, 0x00030003")
    A(f"global_store_short v{vFP}, v32, s[24:25]")
    A("s_cmp_lg_u32 s38, 0"); A("s_cbranch_scc1 L_exitS")
    A("s_mov_b64 exec, 1")
    A("v_mov_b32 v53, s33")
    A(f"global_store_dword v{vZero}, v53, s[28:29]")
    if leak:
        i, j, mult = leak
        g.stamp(11)
        A("s_waitcnt lgkmcnt(0)")
        A(f"s_sub_u32 s36, s{64+2*j}, s{64+2*i}")
        A(f"s_mul_i32 s36, s36, {mult}")
        A("s_min_u32 s36, s36, 100000")
        g.lab("L_leak")
        A("s_memrealtime s[54:55]")
        A("s_waitcnt lgkmcnt(0)")
        A("s_sub_u32 s37, s54, s86")
        A("s_cmp_lt_u32 s37, s36")
        A("s_cbranch_scc1 L_leak")
    g.lab("L_exitS")
    if diag: A("s_add_u32 s32, s32, 4"); A("s_branch L_exit")
    else: A("s_endpgm")

    g.lab("L_service")
    g.vm = []
    PB = 64
    A(f"ds_write2_b32 v{vZero}, v{vZero}, v{vZero} offset0:{LDS_FLAG//4} offset1:{LDS_FLAG//4+1}")
    A("s_mul_i32 s36, s30, 384"); A("s_lshl_b32 s37, s32, 7"); A("s_add_u32 s36, s36, s37")
    A("s_lshr_b32 s37, s30, 2"); A("s_mul_i32 s37, s37, 384")
    A("s_and_b32 s39, s30, 1")
    A("s_lshl_b32 s38, s39, 8")
    A("s_add_u32 s37, s37, s38")
    A("s_cmp_lt_u32 s32, 3")
    A("s_cselect_b32 s36, s36, s37")
    A("s_movk_i32 s38, 3072")
    A("s_cselect_b32 s38, 12288, s38")
    A("s_mul_i32 s37, s31, 80")
    A("v_mul_u32_u24 v52, 10, v2")
    A("v_add_u32 v52, s37, v52")
    A("v_lshlrev_b32 v53, 1, v52")
    A("v_mul_u32_u24 v52, s38, v52")
    A("v_lshl_add_u32 v52, v3, 4, v52")
    A("s_mul_i32 s47, s39, 2816"); A("s_add_u32 s47, s47, 128")
    A("v_add_u32 v54, s47, v52")
    A("s_waitcnt lgkmcnt(0)")
    g.vmem("global_load_dwordx4 v[20:23], v53, s[4:5] nt", "x0")
    g.vmem("global_load_dword v24, v53, s[4:5] offset:16 nt", "x1")
    A("s_bitcmp1_b32 s30, 1")
    A("s_cselect_b32 s40, s18, s16"); A("s_cselect_b32 s41, s19, s17")
    A("s_cmp_lt_u32 s32, 3")
    A("s_cselect_b32 s40, s10, s40"); A("s_cselect_b32 s41, s11, s41")
    A("s_add_u32 s40, s40, s36"); A("s_addc_u32 s41, s41, 0")
    for t in range(10):
        g.vmem(f"global_load_dwordx4 {q4(PB+4*t)}, v52, s[40:41] nt", ("P", t))
        if t < 9: A("v_add_u32 v52, s38, v52")
    ws_epoch()
    A("s_barrier")
    A("s_cmp_lt_u32 s32, 3"); A("s_cbranch_scc1 L_nohalf")
    for t in range(5):
        A(f"global_load_dwordx4 {q4(PB+40+4*t)}, v54, s[40:41] nt")
        if t < 4: A("v_add_u32 v54, 6144, v54")
    g.lab("L_nohalf")
    masks()
    A("s_mul_i32 s36, s30, 10240"); A(f"s_add_u32 s36, s36, {QP_OFF}")
    A("s_add_u32 s44, s28, s36"); A("s_addc_u32 s45, s29, 0")
    A("s_mul_i32 s36, s51, 86"); A("s_lshr_b32 s36, s36, 8")
    A("s_mul_i32 s37, s36, 3"); A("s_sub_u32 s58, s51, s37")
    A("s_mul_i32 s36, s36, 40960"); A(f"s_add_u32 s36, s36, {QP_OFF + 6144}")
    A("s_lshr_b32 s37, s58, 1"); A("s_mul_i32 s37, s37, 10240"); A("s_add_u32 s36, s36, s37")
    A("s_and_b32 s58, s58, 1"); A("s_lshl_b32 s37, s58, 11"); A("s_add_u32 s36, s36, s37")
    A("s_add_u32 s54, s28, s36"); A("s_addc_u32 s55, s29, 0")
    A("s_add_u32 s56, s54, 20480"); A("s_addc_u32 s57, s55, 0")
    A("s_lshl_b32 s36, s30, 10"); A(f"s_add_u32 s36, s36, {HDR_OFF}")
    A("s_add_u32 s42, s28, s36"); A("s_addc_u32 s43, s29, 0")
    A("s_mov_b32 s47, 0x01000100"); A("s_mov_b32 s48, 0x03020302")
    A("s_lshl_b32 s36, s32, 11")
    A("s_lshl_b32 s37, s31, 8"); A("s_add_u32 s36, s36, s37")
    A("v_lshrrev_b32 v53, 4, v1")
    A("v_lshlrev_b32 v53, 6, v53")
    A("v_lshl_add_u32 v54, v3, 3, v53")
    A("v_add_u32 v54, s36, v54")
    def pstep(t, preg, xreg, sel, first):
        a = 12 + 4 * (t & 1)
        A(f"v_perm_b32 v52, v{xreg}, v{xreg}, s{sel}")
        for r in range(4): A(f"v_and_b32 v{a+r}, v52, v{4+r}")
        A("s_nop 1")
        A(f"v_mfma_f32_16x16x32_bf16 v[40:43], {q4(a)}, {q4(preg)}, {'0' if first else 'v[40:43]'}")
    def ppublish(off):
        A("s_nop 7")
        A("v_permlane32_swap_b32 v40, v42")
        A("v_permlane32_swap_b32 v41, v43")
        A("s_nop 1")
        A(f"v_add_f32_dpp v44, v42, v40 row_ror:8 {DPP}")
        A(f"v_add_f32_dpp v45, v43, v41 row_ror:8 {DPP}")
        A("v_bfi_b32 v44, v8, s34, v44")
        A("v_bfi_b32 v45, v8, s34, v45")
        A("s_mov_b32 exec_lo, 0x00ff00ff"); A("s_mov_b32 exec_hi, 0x00ff00ff")
        A(f"global_store_dwordx2 v54, v[44:45], s[44:45] offset:{off} sc1")
        A("s_mov_b64 exec, -1")
    for t in range(10):
        g.wait(("P", t))
        pstep(t, PB + 4 * t, 20 + t // 2, 47 + (t & 1), t == 0)
    A("s_waitcnt lgkmcnt(0)")
    A("s_add_u32 s33, s33, 1"); A("s_and_b32 s34, s33, 0xff")
    ppublish(0)
    g.stamp(1)
    GR = 128
    vA, vB = 30, 31
    A("s_cmp_eq_u32 s32, 1"); A("s_cbranch_scc1 L_jobH")
    A("s_cmp_eq_u32 s32, 2"); A("s_cbranch_scc1 L_jobG")
    A("s_cmp_eq_u32 s32, 3"); A("s_cbranch_scc1 L_jobF")
    A("v_min_u32 v54, 47, v1")
    A("v_lshrrev_b32 v53, 4, v54")
    A("v_and_b32 v52, 15, v54")
    A("v_lshlrev_b32 v52, 4, v52")
    A(f"v_lshl_add_u32 v{vA}, v53, 11, v52")
    A("v_lshlrev_b32 v55, 7, v53")
    A("v_and_b32 v56, 3, v54"); A("v_lshl_add_u32 v55, v56, 5, v55")
    A("v_bfe_u32 v56, v54, 2, 1"); A("v_lshl_add_u32 v55, v56, 3, v55")
    A("v_bfe_u32 v56, v54, 3, 1"); A("v_lshl_add_u32 v55, v56, 2, v55")
    def qgather():
        for p in range(8): A(f"global_load_dwordx4 {q4(GR+4*p)}, v{vA}, s[44:45] offset:{p*256} sc1")
    A("s_waitcnt vmcnt(0)")
    qgather()
    A("s_waitcnt vmcnt(0)")
    g.lab("L_q_chk")
    tagcheck(range(GR, GR + 32), 52)
    retry("q", qgather, sleep=psleep)
    for st in (16, 8, 4):
        for r in range(st): A(f"v_add_f32 v{GR+r}, v{GR+r}, v{GR+st+r}")
    A(f"v_cvt_pk_bf16_f32 v52, v{GR}, v{GR+1}")
    A(f"v_cvt_pk_bf16_f32 v53, v{GR+2}, v{GR+3}")
    A(f"ds_write2_b32 v55, v52, v53 offset0:{LDS_Q//4} offset1:{LDS_Q//4+4}")
    A(f"ds_write_b32 v{vZero}, v{vOne} offset:{LDS_FLAG}")
    g.stamp(2)
    A("s_branch L_svc_done")
    g.lab("L_jobH")
    A("s_mul_i32 s36, s58, 10240")
    A(f"v_add_u32 v{vB}, s36, v{vL16}")
    A("s_cmp_eq_u32 s58, 0"); A("s_cselect_b32 s59, 0, 1.0")
    A("v_and_b32 v52, 15, v1"); A("v_lshrrev_b32 v53, 4, v1"); A("v_lshl_add_u32 v52, v52, 2, v53")
    A("v_bfe_u32 v53, v52, 1, 3"); A(f"v_lshlrev_b32 v{vA}, 5, v53")
    A("v_bfe_u32 v53, v52, 4, 1"); A(f"v_lshl_add_u32 v{vA}, v53, 4, v{vA}")
    A("v_bfe_u32 v53, v52, 5, 1"); A(f"v_lshl_add_u32 v{vA}, v53, 3, v{vA}")
    A("v_and_b32 v53, 1, v52"); A(f"v_lshl_add_u32 v{vA}, v53, 2, v{vA}")
    g.lab("L_hwait")
    A("s_sleep 16")
    A(f"ds_read_b32 v54, v{vZero} offset:{LDS_FLAG+4}")
    A("s_waitcnt lgkmcnt(0)")
    A("v_cmp_eq_u32 vcc, 0, v54")
    A("s_cmp_eq_u64 vcc, 0")
    A("s_cbranch_scc0 L_hwait")
    def hgather():
        for m, sb in enumerate(("s[54:55]", "s[56:57]")):
            for a, va in enumerate((vL16, vB)):
                for k in range(2):
                    A(f"global_load_dwordx4 {q4(GR + 16*m + 8*a + 4*k)}, v{va}, {sb} offset:{1024*k} sc1")
    hgather()
    A("s_waitcnt vmcnt(0)")
    g.lab("L_h_chk")
    tagcheck(range(GR, GR + 32), 52)
    retry("h", hgather, sleep=psleep)
    for m in range(2):
        b = GR + 16 * m
        for r in range(4): A(f"v_add_f32 v{b+r}, v{b+r}, v{b+4+r}")
        for r in range(4): A(f"v_add_f32 v{b+8+r}, v{b+8+r}, v{b+12+r}")
        for r in range(4): A(f"v_fma_f32 v{b+r}, v{b+8+r}, s59, v{b+r}")
    for m in range(2):
        b = GR + 16 * m
        A("s_nop 1")
        A(f"v_permlane32_swap_b32 v{b}, v{b+2}")
        A(f"v_permlane32_swap_b32 v{b+1}, v{b+3}")
        A(f"v_add_f32 v{b}, v{b}, v{b+2}")
        A(f"v_add_f32 v{b+1}, v{b+1}, v{b+3}")
        A("s_nop 1")
        A(f"v_permlane16_swap_b32 v{b}, v{b+1}")
        A(f"v_add_f32 v{b}, v{b}, v{b+1}")
    A(f"v_mov_b32 v{GR+1}, v{GR+16}")
    bf16r(52, GR); bf16r(53, GR + 1)
    A("v_mul_f32 v54, v52, v52")
    A(f"v_mov_b32 v55, {f2u(0.044715):#x}")
    A("v_fma_f32 v54, v54, v55, 1.0")
    A("v_mul_f32 v54, v54, v52")
    A(f"v_mul_f32 v54, {f2u(-2 * 0.7978845608028654 * LOG2E):#x}, v54")
    A("v_exp_f32 v54, v54")
    A("s_nop 0")
    A("v_add_f32 v54, 1.0, v54")
    A("v_rcp_f32 v54, v54")
    A("s_nop 0")
    A("v_mul_f32 v54, v54, v52")
    bf16r(54, 54)
    A("v_mul_f32 v54, v54, v53")
    A("v_cvt_pk_bf16_f32 v54, v54, v54")
    A(f"ds_write_b32 v{vA}, v54 offset:{LDS_HID}")
    g.stamp(2)
    A("s_branch L_svc_done")
    g.lab("L_jobG")
    A("v_mul_u32_u24 v53, 20, v1")
    A(f"global_load_dwordx4 {q4(GR)}, v53, s[4:5] nt")
    A(f"global_load_dword v{GR+4}, v53, s[4:5] offset:16 nt")
    A(f"global_load_dwordx4 {q4(GR+6)}, v53, s[22:23] nt")
    A(f"global_load_dword v{GR+10}, v53, s[22:23] offset:16 nt")
    if prefetch_code:
        A("s_getpc_b64 s[36:37]")
        g.lab("L_pc")
        A(f"s_sub_u32 s36, s36, L_pc-{KN}"); A("s_subb_u32 s37, s37, 0")
        A("v_lshlrev_b32 v53, 7, v1")
        A("v_add_u32 v53, 1024, v53")
        A(f"v_min_u32 v53, L_end-{KN}, v53")
        A("global_load_dword v31, v53, s[36:37]")
    A("v_mov_b32 v56, 0")
    A("s_waitcnt vmcnt(0)")
    for i in range(5):
        xr = GR + i; wr = GR + 6 + i
        A(f"v_lshlrev_b32 v52, 16, v{xr}"); A(f"v_and_b32 v53, 0xffff0000, v{xr}")
        A(f"v_lshlrev_b32 v54, 16, v{wr}"); A(f"v_and_b32 v55, 0xffff0000, v{wr}")
        A("v_mul_f32 v52, v52, v54"); A("v_mul_f32 v53, v53, v55")
        A("v_cvt_pk_bf16_f32 v52, v52, v53")
        A("v_lshlrev_b32 v53, 16, v52"); A("v_and_b32 v52, 0xffff0000, v52")
        A("v_add_f32 v56, v56, v53"); A("v_add_f32 v56, v56, v52")
    red64(56, "v_add_f32")
    A("s_nop 0")
    A("v_readlane_b32 s36, v56, 63")
    A("s_nop 1")
    A("v_mov_b32 v56, s36")
    bf16r(56, 56)
    A(f"v_mul_f32 v56, {f2u(-LOG2E):#x}, v56")
    A("v_exp_f32 v56, v56")
    A("s_nop 0")
    A("v_add_f32 v56, 1.0, v56")
    A("v_rcp_f32 v56, v56")
    A("s_nop 0")
    bf16r(56, 56)
    A("v_sub_f32 v57, 1.0, v56")
    bf16r(57, 57)
    A(f"ds_write_b64 v{vZero}, v[56:57] offset:{LDS_G}")
    g.stamp(2)
    A("s_branch L_svc_done")
    g.lab("L_jobF")
    A("s_cmp_eq_u32 s39, 0"); A("s_cselect_b32 s47, s47, s48")
    A("s_waitcnt vmcnt(1)")
    for t in range(5): pstep(t, PB + 40 + 4 * t, 20 + t, 47, t == 0)
    ppublish(2048)
    A("v_lshlrev_b32 v55, 3, v3")
    g.lab("L_fwait")
    A("s_sleep 8")
    A(f"ds_read_b32 v54, v{vZero} offset:{LDS_FLAG+4}")
    A(f"ds_read_b64 v[56:57], v55 offset:{LDS_ML}")
    A("s_waitcnt lgkmcnt(0)")
    A("v_cmp_ne_u32 vcc, 8, v54")
    A("s_cmp_eq_u64 vcc, 0")
    A("s_cbranch_scc0 L_fwait")
    A("v_mov_b32 v58, s33"); A("v_mov_b32 v59, s33")
    A("s_lshl_b32 s36, s31, 7")
    A(f"v_add_u32 v52, s36, v{vL16}")
    A("s_mov_b64 exec, 0xff")
    A("global_store_dwordx4 v52, v[56:59], s[42:43] sc1")
    A("s_mov_b64 exec, -1")
    g.stamp(3)
    def hdrgather(): A(f"global_load_dwordx4 {q4(GR)}, v{vL16}, s[42:43] sc1")
    A("s_waitcnt vmcnt(0)")
    hdrgather()
    A("s_waitcnt vmcnt(0)")
    g.lab("L_hd_chk")
    A(f"v_xor_b32 v52, s33, v{GR+2}"); A(f"v_xor_b32 v53, s33, v{GR+3}")
    A("v_or_b32 v52, v52, v53")
    A("v_cmp_ne_u32 vcc, 0, v52")
    retry("hd", hdrgather, sleep=psleep)
    A(f"v_mov_b32 v52, v{GR}")
    red64(52, "v_max_f32")
    A("s_nop 0")
    A("v_readlane_b32 s36, v52, 63")
    A("s_nop 1")
    A(f"v_subrev_f32 v52, s36, v{GR}")
    A("v_exp_f32 v52, v52")
    A("s_nop 0")
    A(f"v_mul_f32 v53, v52, v{GR+1}")
    red64(53, "v_add_f32")
    A("v_rcp_f32 v53, v53")
    A("s_nop 0")
    A("v_readlane_b32 s36, v53, 63")
    A("v_cmp_eq_u32 vcc, s31, v2")
    A("s_nop 0")
    A("v_mul_f32 v52, s36, v52")
    A("s_mov_b64 exec, vcc")
    A(f"ds_write_b32 v{vF4}, v52 offset:{LDS_F}")
    A("s_mov_b64 exec, -1")
    g.stamp(2)

    g.lab("L_svc_done")
    A("s_waitcnt lgkmcnt(0)")
    A("s_barrier")
    KB = 64
    if diag: A("s_barrier"); A("s_barrier")
    g.lab("L_exit")
    if diag and not leak:
        g.stamp(11)
        g.lab("L_dwait")
        A("s_sleep 32")
        A("s_memrealtime s[54:55]")
        A("s_waitcnt lgkmcnt(0)")
        A("s_sub_u32 s37, s54, s64")
        A("s_cmp_lt_u32 s37, 3500")
        A("s_cbranch_scc1 L_dwait")
        A("s_mov_b64 exec, 1")
        A("s_mul_i32 s36, s2, 12"); A("s_add_u32 s36, s36, s32"); A("s_lshl_b32 s36, s36, 7")
        A(f"s_add_u32 s36, s36, {STAMP_OFF}")
        if wsbase: A(f"s_sub_u32 s28, s28, {wsbase}"); A("s_subb_u32 s29, s29, 0")
        A("v_mov_b32 v52, s36")
        A("s_getreg_b32 s37, hwreg(HW_REG_XCC_ID)")
        A("s_waitcnt lgkmcnt(0)")
        A("s_mov_b32 s88, s46"); A("s_mov_b32 s89, s37")
        for k in range(8):
            for r in range(4): A(f"v_mov_b32 v{KB+4*k+r}, s{64+4*k+r}")
            A(f"global_store_dwordx4 v52, {q4(KB+4*k)}, s[28:29] offset:{16*k}")
    g.lab("L_end")
    A("s_endpgm")
    L.append('.section .rodata,"a"'); L.append(".p2align 6"); L.append(f".amdhsa_kernel {KN}")
    L.append("  .amdhsa_next_free_vgpr 168")
    L.append("  .amdhsa_next_free_sgpr 96")
    L.append("  .amdhsa_accum_offset 168")
    L.append("  .amdhsa_group_segment_fixed_size 0"); L.append("  .amdhsa_kernarg_size 104")
    L.append("  .amdhsa_user_sgpr_count 2"); L.append("  .amdhsa_user_sgpr_kernarg_segment_ptr 1")
    L.append("  .amdhsa_system_sgpr_workgroup_id_x 1")
    L.append("  .amdhsa_float_denorm_mode_32 3")
    L.append(".end_amdhsa_kernel")
    return "\n".join(L) + "\n"

if __name__ == "__main__":
    import argparse, hazard, ast
    ap = argparse.ArgumentParser()
    ap.add_argument("-o", default="gated_mix__sliding_block_cached__geglu_ffn__decode.s")
    ap.add_argument("kv", nargs="*")
    a = ap.parse_args()
    kw = {}
    for x in a.kv:
        k, v = x.split("="); kw[k] = ast.literal_eval(v)
    t = gen(**kw)
    open(a.o, "w").write(t)
    pr = hazard.check(t)
    for x in pr: print(x)
    print(len(pr), "hazard findings")
```

```python
import sys, struct
KN = "gated_mix__sliding_block_cached__geglu_ffn__decode_kernel"

QP_OFF = 4096
HDR_OFF = QP_OFF + 32 * 10240
CNT_OFF = HDR_OFF + 32 * 1024
OP_OFF = CNT_OFF + 32 * 1024
FP_OFF = OP_OFF + 192 * 1024
STAMP_OFF = 1 << 22

LDS_Q = 0
LDS_G = 384
LDS_FLAG = 392
LDS_F = 400
LDS_ML = 448
LDS_HID = 512
LDS_O = 768
OSTR = 3072 + 16
LDS_BYTES = LDS_O + 8 * OSTR

def f2u(f): return struct.unpack("<I", struct.pack("<f", f))[0]
LOG2E = 1.4426950408889634

HEADER = open("gated_mix__sliding_block_cached__geglu_ffn__decode.s.ref").read().split("; Override")[0]

class G:
    def __init__(s, diag=False):
        s.L = []; s.vm = []; s.diag = diag
    def A(s, x): s.L.append("    " + x)
    def lab(s, x): s.L.append(x + ":")
    def c(s, x): s.L.append("    ; " + x)
    def vmem(s, x, tag=None):
        s.A(x); s.vm.append(tag)
    def wait(s, tag):
        idx = max(i for i, t in enumerate(s.vm) if t == tag)
        n = len(s.vm) - 1 - idx
        s.A(f"s_waitcnt vmcnt({n})")
    def stamp(s, i):
        if s.diag: s.A(f"s_memrealtime s[{64+2*i}:{65+2*i}]")

def q4(b): return f"v[{b}:{b+3}]"
DPP = "row_mask:0xf bank_mask:0xf"

def gen(D=3, diag=False, spin=200000, prefetch_code=False, q1pos=21, rot=37, leak=None, psleep=8, wsbase=0,
        dyn=True, w0=4, b0early=True, full=True, wentry=True, layout='inter', snt=True, prio=0, pf='sc1', sf='sc1', pdepth=0, b0late=True, wdyn_early=False, of='', copoll=True, wall=False):
    g = G(diag); A = g.A
    L = g.L
    B1 = 64; B2 = 112
    vZero, vOne = 60, 61
    vM, vL = 62, 63
    vL16, vOw, vG, vCnt, vK4 = 160, 161, 162, 163, 164
    if dyn:
        KD, VD, VD2 = 64, 76, 88
        WB = B2
        TA = 100
    else:
        WB = B1
        TA = 20
    vWoA, vWoB, vWd, vOPst, vGat, vGH, vFP, vHid, vOr, vG2 = TA, TA + 1, TA + 2, TA + 3, TA + 4, TA + 5, TA + 6, TA + 7, TA + 8, TA + 10
    S = 4
    NDYN = 512 - 64 * (S + 1)
    L.append(HEADER.rstrip())
    L.append(f"; @launch grid=(256,1,1) block=(768,1,1) lds={LDS_BYTES}")
    L.append('.amdgcn_target "amdgcn-amd-amdhsa--gfx950"')
    L.append(".text"); L.append(f".globl {KN}"); L.append(".p2align 8"); L.append(f".type {KN},@function")
    g.lab(KN)
    A("s_cmp_ge_u32 s2, 256"); A("s_cbranch_scc1 L_end")
    A("s_load_dwordx16 s[4:19], s[0:1], 0")
    A("s_load_dwordx8 s[20:27], s[0:1], 64")
    A("s_load_dwordx2 s[28:29], s[0:1], 96")
    g.stamp(0)
    A("v_lshrrev_b32 v52, 6, v0")
    A("v_and_b32 v1, 63, v0")
    A("v_readfirstlane_b32 s32, v52")
    A("v_lshrrev_b32 v2, 3, v1")
    A("v_and_b32 v3, 7, v1")
    A(f"v_mov_b32 v{vZero}, 0")
    A("s_lshr_b32 s30, s2, 3")
    A("s_and_b32 s31, s2, 7")
    A(f"ds_write2_b32 v{vZero}, v{vZero}, v{vZero} offset0:{LDS_FLAG//4} offset1:{LDS_FLAG//4+1}")
    A("s_cmp_lt_u32 s32, 4")
    A("s_cbranch_scc0 L_stream")

    def common_consts():
        A("s_mul_i32 s51, s30, 205"); A("s_lshr_b32 s51, s51, 11")
        A("s_mul_i32 s52, s51, 10"); A("s_sub_u32 s52, s30, s52")
        A("s_mul_i32 s36, s31, 3"); A("s_add_u32 s51, s51, s36")
        A("s_min_u32 s51, s51, 23")
        A("v_and_b32 v52, 1, v1")
        A("v_mov_b32 v53, 0xffff")
        A("v_lshlrev_b32 v52, 4, v52")
        A("v_lshlrev_b32 v53, v52, v53")
        A("v_lshrrev_b32 v52, 1, v3")
        for r in range(4):
            A(f"v_cmp_eq_u32 vcc, {r}, v52")
            A("s_nop 1")
            A(f"v_cndmask_b32 v{4+r}, 0, v53, vcc")
        A("v_mov_b32 v8, 0xff")
        A(f"v_mov_b32 v{vOne}, 1")
        A(f"s_mov_b32 s46, {spin}")
        A(f"v_lshlrev_b32 v{vL16}, 4, v1")
        A(f"v_lshlrev_b32 v{vK4}, 2, v2")

    def retry(name, reload_fn, sleep=0):
        A("s_cmp_eq_u64 vcc, 0")
        A(f"s_cbranch_scc1 L_{name}_ok")
        A("s_sub_u32 s46, s46, 1"); A("s_cbranch_scc1 L_%s_ok" % name)
        if sleep: A(f"s_sleep {sleep}")
        reload_fn()
        A("s_waitcnt vmcnt(0)")
        A(f"s_branch L_{name}_chk")
        g.lab(f"L_{name}_ok")

    def tagcheck(rlist, tmp, fulltags=()):
        for r in rlist: A(f"v_xor_b32 v{r}, s34, v{r}")
        for r in fulltags: A(f"v_xor_b32 v{r}, s33, v{r}")
        rl = list(rlist)
        A(f"v_or3_b32 v{tmp}, v{rl[0]}, v{rl[1]}, v{rl[2]}"); rl = rl[3:]
        while len(rl) >= 2:
            A(f"v_or3_b32 v{tmp}, v{tmp}, v{rl[0]}, v{rl[1]}"); rl = rl[2:]
        if rl: A(f"v_or_b32 v{tmp}, v{tmp}, v{rl[0]}")
        A(f"v_and_b32 v{tmp}, v8, v{tmp}")
        if fulltags: A(f"v_or3_b32 v{tmp}, v{tmp}, v{fulltags[0]}, v{fulltags[1]}")
        A(f"v_cmp_ne_u32 vcc, 0, v{tmp}")

    def red8(regs, op="v_add_f32"):
        for mode in ("quad_perm:[1,0,3,2]", "quad_perm:[2,3,0,1]", "row_half_mirror"):
            if len(regs) < 3: A(f"s_nop {2 - len(regs)}")
            for r in regs: A(f"{op}_dpp v{r}, v{r}, v{r} {mode} {DPP}")

    def bf16r(dst, src):
        A(f"v_cvt_pk_bf16_f32 v{dst}, v{src}, v{src}")
        A(f"v_and_b32 v{dst}, 0xffff0000, v{dst}")

    def red64(r, op):
        for mode in ("quad_perm:[1,0,3,2]", "quad_perm:[2,3,0,1]", "row_half_mirror", "row_mirror"):
            A("s_nop 1"); A(f"{op}_dpp v{r}, v{r}, v{r} {mode} {DPP}")
        A("s_nop 1"); A(f"{op}_dpp v{r}, v{r}, v{r} row_bcast:15 row_mask:0xa bank_mask:0xf")
        A("s_nop 1"); A(f"{op}_dpp v{r}, v{r}, v{r} row_bcast:31 row_mask:0xc bank_mask:0xf")

    def red8groups(r, op):
        A("s_nop 1"); A(f"{op}_dpp v{r}, v{r}, v{r} row_ror:8 {DPP}")
        A("s_nop 1"); A(f"{op}_dpp v{r}, v{r}, v{r} row_bcast:15 row_mask:0xa bank_mask:0xf")
        A("s_nop 1"); A(f"{op}_dpp v{r}, v{r}, v{r} row_bcast:31 row_mask:0xc bank_mask:0xf")

    def rows_reduce(b, lead_nop=True):
        if lead_nop: A("s_nop 0")
        A(f"v_permlane32_swap_b32 v{b}, v{b+2}")
        A(f"v_permlane32_swap_b32 v{b+1}, v{b+3}")
        A(f"v_add_f32 v{b}, v{b}, v{b+2}")
        A(f"v_add_f32 v{b+1}, v{b+1}, v{b+3}")
        A("s_nop 1")
        A(f"v_permlane16_swap_b32 v{b}, v{b+1}")
        A(f"v_add_f32 v{b}, v{b}, v{b+1}")

    def ws_epoch():
        if wsbase: A(f"s_add_u32 s28, s28, {wsbase}"); A("s_addc_u32 s29, s29, 0")
        A("s_load_dword s33, s[28:29], 0")

    def lds_wait(name, off, cond, sleep):
        g.lab(f"L_{name}")
        A(f"ds_read_b32 v54, v{vZero} offset:{off}")
        A("s_waitcnt lgkmcnt(0)")
        A(cond)
        A("s_cmp_eq_u64 vcc, 0")
        A(f"s_cbranch_scc1 L_{name}_ok")
        A(f"s_sleep {sleep}")
        A(f"s_branch L_{name}")
        g.lab(f"L_{name}_ok")

    SNT = " nt" if snt else ""
    PB = 64
    A("s_mul_i32 s36, s30, 384"); A("s_lshl_b32 s37, s32, 7"); A("s_add_u32 s36, s36, s37")
    A("s_lshr_b32 s37, s30, 2"); A("s_mul_i32 s37, s37, 384")
    A("s_and_b32 s39, s30, 1")
    A("s_lshl_b32 s38, s39, 8")
    A("s_add_u32 s37, s37, s38")
    A("s_cmp_lt_u32 s32, 3")
    A("s_cselect_b32 s36, s36, s37")
    A("s_movk_i32 s38, 3072")
    A("s_cselect_b32 s38, 12288, s38")
    A("s_mul_i32 s37, s31, 80")
    A("v_mul_u32_u24 v52, 10, v2")
    A("v_add_u32 v52, s37, v52")
    A("v_lshlrev_b32 v53, 1, v52")
    A("v_mul_u32_u24 v52, s38, v52")
    A("v_lshl_add_u32 v52, v3, 4, v52")
    A("s_mul_i32 s47, s39, 2816"); A("s_add_u32 s47, s47, 128")
    A("v_add_u32 v54, s47, v52")
    A("s_waitcnt lgkmcnt(0)")
    if not b0late: A("s_barrier")
    g.vmem("global_load_dwordx4 v[20:23], v53, s[4:5]" + SNT, "x0")
    g.vmem("global_load_dword v24, v53, s[4:5] offset:16" + SNT, "x1")
    A("s_bitcmp1_b32 s30, 1")
    A("s_cselect_b32 s40, s18, s16"); A("s_cselect_b32 s41, s19, s17")
    A("s_cmp_lt_u32 s32, 3")
    A("s_cselect_b32 s40, s10, s40"); A("s_cselect_b32 s41, s11, s41")
    A("s_add_u32 s40, s40, s36"); A("s_addc_u32 s41, s41, 0")
    ws_epoch()
    if dyn:
        A("s_or_b32 s36, s31, s32"); A("s_cmp_lg_u32 s36, 0"); A("s_cbranch_scc1 L_noinit")
        A("s_lshl_b32 s36, s30, 10"); A(f"s_add_u32 s36, s36, {CNT_OFF}")
        A("v_mov_b32 v53, s36")
        A("s_mov_b64 exec, 1")
        A(f"global_store_dword v53, v{vZero}, s[28:29] sc1")
        A("s_mov_b64 exec, -1")
        g.lab("L_noinit")
    for t in range(10):
        if pdepth and t >= pdepth: g.wait(("P", t - pdepth))
        g.vmem(f"global_load_dwordx4 {q4(PB+4*t)}, v52, s[40:41] nt", ("P", t))
        if t < 9: A("v_add_u32 v52, s38, v52")
    if b0late: A("s_barrier")
    A("s_cmp_lt_u32 s32, 3"); A("s_cbranch_scc1 L_service")
    for t in range(5):
        A(f"global_load_dwordx4 {q4(PB+40+4*t)}, v54, s[40:41] nt")
        if t < 4: A("v_add_u32 v54, 6144, v54")
    A("s_branch L_service")
    svc_vm = list(g.vm); g.vm = []

    g.lab("L_stream")
    if prio: A(f"s_setprio {prio}")
    A("s_sub_u32 s32, s32, 4")
    A("v_mul_u32_u24 v10, 384, v2")
    A("v_lshl_add_u32 v10, v3, 4, v10")
    A("s_lshl_b32 s36, s31, 3"); A("s_add_u32 s36, s36, s32")
    if layout == "blk": A("s_lshl_b32 s36, s36, 3")
    IST = 64 if layout == "inter" else 1
    A(f"s_mul_i32 s61, s30, {rot}")
    A("s_add_u32 s62, s61, s36")
    A("s_mul_i32 s35, s30, 12582912")
    A(f"s_add_u32 s35, s35, {28672*384}")
    if dyn: seq = [("K", t) for t in range(12)] + [("V", t) for t in range(12)] + [("Kd", t) for t in range(3)] + [("Vd", t) for t in range(3)]
    else: seq = [("K", t) for t in range(24)] + [("V", t) for t in range(24)]
    NSEQ = len(seq)
    cur = [None]
    def item_addr(item):
        A(f"s_add_u32 s36, s62, {IST * item}"); A("s_and_b32 s36, s36, 511"); A("s_mul_i32 s36, s36, 3072")
        A("v_add_u32 v9, s36, v10"); cur[0] = item
    pv_idx = [-1]
    NWL = 5
    def w_load(i):
        if i == 0: g.vmem(f"global_load_dwordx4 {q4(WB)}, v{vWd}, s[20:21] nt", ("W", 0))
        else: g.vmem(f"global_load_dwordx4 {q4(WB+4*i)}, v{vWoA if i < 3 else vWoB}, s[12:13] offset:{-2560 if i & 1 else 2560} nt", ("W", i))
    def kreg(idx): return B1 + 4 * idx
    def vreg(idx): return (B2 if dyn else B1) + 4 * idx
    def grab():
        A("s_mov_b64 exec, 1")
        A(f"global_atomic_add v{vG}, v{vCnt}, v{vOne}, s[28:29] sc0 sc1")
        A("s_mov_b64 exec, -1")
    def issue(pos):
        kind, idx = seq[pos]
        if kind in ("K", "V"): item, s = divmod(idx, 3)
        else: item, s = S, idx
        if cur[0] != item: item_addr(item)
        if (kind, idx) == ("Kd", 0):
            if w0:
                A(f"v_mov_b32 v{vG}, {NDYN}")
                A(f"s_cmp_lt_u32 s32, {w0}"); A("s_cbranch_scc1 L_nograb")
            if wdyn_early:
                assert pv_idx[0] >= 5
                A("s_cmp_lt_u32 s2, 240"); A("s_cbranch_scc0 L_nowe")
                sv = list(g.vm)
                for i in range(NWL): w_load(i)
                g.vm = sv
                g.lab("L_nowe")
            grab()
            if w0: g.lab("L_nograb")
        reg = kreg(idx) if kind == "K" else vreg(idx) if kind == "V" else (KD if kind == "Kd" else VD) + 4 * idx
        base = "s[6:7]" if kind[0] == "K" else "s[8:9]"
        g.vmem(f"global_load_dwordx4 {q4(reg)}, v9, {base} offset:{s*128} nt", (kind, idx))
    item_addr(0)
    A("s_waitcnt lgkmcnt(0)")
    if not b0late: A("s_barrier")
    A("s_add_u32 s6, s6, s35"); A("s_addc_u32 s7, s7, 0")
    for t in range(D): issue(t)
    A("s_add_u32 s8, s8, s35"); A("s_addc_u32 s9, s9, 0")
    ws_epoch()
    if b0late: A("s_barrier")
    common_consts()
    A(f"s_mov_b32 s49, {f2u(192 ** -0.5):#x}")
    A(f"s_mov_b32 s50, {f2u(LOG2E):#x}")
    A(f"s_mul_i32 s36, s32, {OSTR}")
    A(f"v_add_u32 v{vOw}, s36, v{vL16}")
    A("s_lshl_b32 s53, s51, 3"); A("s_add_u32 s53, s53, s32")
    A("s_lshl_b32 s37, s52, 7")
    A("s_mul_i32 s36, s53, 40960"); A("s_add_u32 s36, s36, s37")
    A("s_add_u32 s12, s12, s36"); A("s_addc_u32 s13, s13, 0")
    A("s_mul_i32 s36, s53, 10240"); A("s_add_u32 s36, s36, s37")
    A("s_add_u32 s20, s20, s36"); A("s_addc_u32 s21, s21, 0")
    A("s_lshl_b32 s36, s30, 10"); A(f"s_add_u32 s36, s36, {CNT_OFF}")
    A(f"v_mov_b32 v{vCnt}, s36")
    NG = 4 if dyn else 8
    for gg in range(NG): A(f"v_mov_b32 v{32+gg}, 0")
    for r in range(12): A(f"v_mov_b32 v{40+r}, 0")
    g.stamp(1)
    nxt = [D]
    def slot(limit=None):
        if nxt[0] < (limit or NSEQ):
            g.wait(seq[nxt[0] - D]); issue(nxt[0]); nxt[0] += 1
    assert 12 + D <= q1pos <= 24
    while nxt[0] < q1pos: slot()
    g.stamp(2)
    A("v_lshlrev_b32 v52, 4, v3")
    g.lab("L_qwait")
    A(f"ds_read_b32 v54, v{vZero} offset:{LDS_FLAG}")
    for s in range(3): A(f"ds_read_b128 {q4(20+4*s)}, v52 offset:{LDS_Q + 128*s}")
    A("s_waitcnt lgkmcnt(0)")
    A("v_cmp_eq_u32 vcc, 0, v54")
    A("s_cmp_eq_u64 vcc, 0")
    A("s_cbranch_scc1 L_qready")
    A("s_sleep 2")
    A("s_branch L_qwait")
    g.lab("L_qready")
    A("s_add_u32 s33, s33, 1"); A("s_and_b32 s34, s33, 0xff")
    g.stamp(3)
    def qk(groups, nslots, limit):
        at = [12 * (i + 1) // (nslots + 1) for i in range(nslots)]
        for sr in range(12):
            s, r = divmod(sr, 4)
            for _ in range(at.count(sr)): slot(limit)
            for gg in groups:
                A(f"v_dot2c_f32_bf16 v{32+gg}, v{kreg(3*gg+s) + r}, v{20+4*s+r}")
    qk(range(4), 1, 24)
    if not dyn:
        while nxt[0] < 24 + D: slot()
        g.stamp(4)
        qk(range(4, 8), 1, 36)
    SR = list(range(32, 32 + NG))
    red8(SR)
    def round_pairs():
        for p in range(NG // 2): A(f"v_cvt_pk_bf16_f32 v{52+p}, v{32+2*p}, v{33+2*p}")
        for p in range(NG // 2):
            A(f"v_lshlrev_b32 v{32+2*p}, 16, v{52+p}"); A(f"v_and_b32 v{33+2*p}, 0xffff0000, v{52+p}")
    round_pairs()
    for r in SR: A(f"v_mul_f32 v{r}, s49, v{r}")
    round_pairs()
    slot()
    A("v_max3_f32 v52, v32, v33, v34")
    if dyn: A("v_max_f32 v52, v52, v35")
    else:
        A("v_max3_f32 v53, v35, v36, v37"); A("v_max3_f32 v52, v52, v38, v39"); A("v_max_f32 v52, v52, v53")
    red8groups(52, "v_max_f32")
    A("v_mul_f32 v52, s50, v52")
    A("s_nop 0")
    A("v_readlane_b32 s37, v52, 63")
    A("s_nop 1")
    A(f"v_mov_b32 v{vM}, s37")
    for r in SR: A(f"v_fma_f32 v{r}, v{r}, s50, -v{vM}")
    for r in SR: A(f"v_exp_f32 v{r}, v{r}")
    A(f"v_add_f32 v{vL}, v32, v33")
    for r in SR[2:]: A(f"v_add_f32 v{vL}, v{vL}, v{r}")
    for r in SR: A(f"v_cvt_pk_bf16_f32 v{r}, v{r}, v{r}")
    def ml_write(count):
        red8groups(vL, "v_add_f32")
        A("s_lshl_b32 s36, s32, 2")
        A("v_mov_b32 v52, s36")
        A("s_mov_b32 exec_lo, 0"); A("s_mov_b32 exec_hi, 0x80000000")
        A(f"ds_write2_b32 v52, v{vM}, v{vL} offset0:{LDS_ML//4} offset1:{LDS_ML//4+8}")
        if count: A(f"ds_add_u32 v{vZero}, v{vOne} offset:{LDS_FLAG+4}")
        A("s_mov_b64 exec, -1")
    if not dyn: ml_write(True)
    g.stamp(5)
    slot()
    A(f"v_mul_u32_u24 v{vWd}, 1280, v2")
    A(f"v_lshl_add_u32 v{vWd}, v3, 4, v{vWd}")
    A("v_and_b32 v53, 1, v2"); A("v_lshrrev_b32 v52, 1, v2"); A("v_lshl_add_u32 v52, v53, 4, v52")
    A("v_add_u32 v52, 2, v52")
    A(f"v_mul_u32_u24 v{vWoA}, 1280, v52")
    A(f"v_lshl_add_u32 v{vWoA}, v3, 4, v{vWoA}")
    A(f"v_add_u32 v{vWoB}, 10240, v{vWoA}")
    A("s_lshr_b32 s36, s32, 1"); A("s_lshl_b32 s36, s36, 10")
    A("s_and_b32 s37, s32, 1"); A("s_lshl_b32 s37, s37, 6"); A("s_add_u32 s36, s36, s37")
    A(f"v_mul_u32_u24 v{vOr}, {OSTR}, v2")
    A("v_lshrrev_b32 v52, 1, v3"); A(f"v_lshl_add_u32 v{vOr}, v52, 4, v{vOr}")
    A("v_and_b32 v53, 1, v3"); A(f"v_lshl_add_u32 v{vOr}, v53, 8, v{vOr}")
    A(f"v_add_u32 v{vOr}, s36, v{vOr}")
    A("v_lshrrev_b32 v52, 4, v1"); A("v_lshlrev_b32 v52, 5, v52"); A("v_lshl_add_u32 v52, v3, 2, v52")
    A("s_mul_i32 s36, s30, 6"); A("s_add_u32 s36, s36, s32"); A("s_lshl_b32 s36, s36, 10")
    A("s_lshl_b32 s37, s31, 7"); A("s_add_u32 s36, s36, s37"); A(f"s_add_u32 s36, s36, {OP_OFF}")
    A(f"v_add_u32 v{vOPst}, s36, v52")
    A("s_lshl_b32 s36, s52, 1"); A("s_add_u32 s36, s36, s32"); A("s_lshl_b32 s36, s36, 12")
    A("s_lshl_b32 s37, s51, 7"); A("s_add_u32 s36, s36, s37"); A(f"s_add_u32 s36, s36, {FP_OFF}")
    A(f"v_add_u32 v{vFP}, s36, v52")
    A("s_lshl_b32 s36, s53, 10"); A(f"s_add_u32 s36, s36, {OP_OFF}")
    if copoll:
        assert not dyn
        A(f"v_add_u32 v{vGat}, s36, v{vL16}")
        A(f"s_mul_i32 s36, s32, {OSTR}"); A(f"s_add_u32 s36, s36, {LDS_O + 1024}")
        A("v_lshrrev_b32 v52, 4, v1"); A("v_lshlrev_b32 v52, 2, v52"); A("v_lshl_add_u32 v52, v3, 4, v52")
        A(f"v_add_u32 v{vG}, s36, v52")
        A(f"v_lshl_add_u32 v{vCnt}, v2, 4, s36")
    else:
        A(f"v_lshl_add_u32 v{vGat}, v3, 7, s36")
        A(f"v_lshl_add_u32 v{vGat}, v2, 4, v{vGat}")
    A("s_mul_i32 s36, s53, 171"); A("s_lshr_b32 s36, s36, 10")
    A("s_lshl_b32 s36, s36, 10"); A(f"s_add_u32 s36, s36, {HDR_OFF}")
    A(f"v_lshl_add_u32 v{vGH}, v3, 7, s36")
    A("s_lshl_b32 s36, s32, 5")
    A(f"v_add_u32 v{vHid}, s36, v{vK4}")

    NV = 12 if dyn else 24
    def pv_step(idx, cls, st):
        gg, s = divmod(idx, 3)
        a = 12 + 4 * (gg & 1)
        pv_idx[0] = idx
        if s == 0:
            for r in range(4): A(f"v_and_b32 v{a+r}, v{32+gg}, v{4+r}")
        g.wait(("V", idx))
        issued = False
        if nxt[0] < NSEQ:
            if nxt[0] <= NV + idx + D:
                issue(nxt[0]); nxt[0] += 1; issued = True
        elif cls == "A" and st["w"] < NWL:
            w_load(st["w"]); st["w"] += 1; issued = True
        if s == 0 and not issued: A("s_nop 0")
        A(f"v_mfma_f32_16x16x32_bf16 {q4(40+4*s)}, {q4(a)}, {q4(vreg(idx))}, {q4(40+4*s)}")
    def owrite():
        for s in range(3): A(f"ds_write_b128 v{vOw}, {q4(40+4*s)} offset:{LDS_O + 1024*s}")

    if dyn:
        for idx in range(12): pv_step(idx, "C", None)
        while nxt[0] < NSEQ:
            issue(nxt[0]); nxt[0] += 1
        assert g.vm[-6:] == seq[-6:]
        g.stamp(6)
        if diag: A("s_mov_b32 s63, 0")
        def softmax_item(tag):
            A("v_add_f32 v37, v37, v38")
            A("v_add_f32 v37, v37, v39")
            red8([37])
            bf16r(37, 37)
            A("v_mul_f32 v37, s49, v37")
            bf16r(37, 37)
            A(f"v_fma_f32 v38, v37, s50, -v{vM}")
            A("v_cmp_lt_f32 vcc, 0, v38")
            A("s_cmp_eq_u64 vcc, 0")
            A(f"s_cbranch_scc1 L_nors{tag}")
            A("v_mov_b32 v52, v37")
            red8groups(52, "v_max_f32")
            A("v_mul_f32 v52, s50, v52")
            A("s_nop 0")
            A("v_readlane_b32 s36, v52, 63")
            A("s_nop 1")
            A(f"v_subrev_f32 v52, s36, v{vM}")
            A("v_exp_f32 v52, v52")
            A(f"v_mov_b32 v{vM}, s36")
            A(f"v_mul_f32 v{vL}, v{vL}, v52")
            for r in range(12): A(f"v_mul_f32 v{40+r}, v{40+r}, v52")
            A(f"v_fma_f32 v38, v37, s50, -v{vM}")
            g.lab(f"L_nors{tag}")
            A("v_exp_f32 v38, v38")
            A("s_nop 0")
            A(f"v_add_f32 v{vL}, v{vL}, v38")
            A("v_cvt_pk_bf16_f32 v38, v38, v38")
            for r in range(4): A(f"v_and_b32 v{12+r}, v38, v{4+r}")
        def pv_item(vb):
            for s in range(3): A(f"v_mfma_f32_16x16x32_bf16 {q4(40+4*s)}, v[12:15], {q4(vb+4*s)}, {q4(40+4*s)}")
        pars = ((VD, VD2), (VD2, VD)) if full else ((VD, VD),)
        for par, (vcur, vnxt) in enumerate(pars):
            g.lab(f"L_dyn{par}")
            for s in range(3): A(f"v_mov_b32 v{37+s}, 0")
            if full: A(f"s_mov_b32 s60, {par}")
            A("s_waitcnt vmcnt(3)")
            A(f"v_readfirstlane_b32 s36, v{vG}")
            for r in range(4):
                for s in range(3): A(f"v_dot2c_f32_bf16 v{37+s}, v{KD+4*s+r}, v{20+4*s+r}")
            A(f"s_cmp_ge_u32 s36, {NDYN}"); A("s_cbranch_scc1 L_dyn_last")
            grab()
            if layout == "inter": A(f"s_add_u32 s36, s36, {64 * (S + 1)}")
            else:
                A("s_lshr_b32 s37, s36, 6"); A("s_and_b32 s36, s36, 63"); A("s_lshl_b32 s36, s36, 3")
                A("s_add_u32 s36, s36, s37"); A(f"s_add_u32 s36, s36, {S + 1}")
            A("s_add_u32 s36, s36, s61"); A("s_and_b32 s36, s36, 511")
            A("s_mul_i32 s36, s36, 3072")
            A("v_add_u32 v9, s36, v10")
            for s in range(3): A(f"global_load_dwordx4 {q4(KD+4*s)}, v9, s[6:7] offset:{128*s} nt")
            if full:
                for s in range(3): A(f"global_load_dwordx4 {q4(vnxt+4*s)}, v9, s[8:9] offset:{128*s} nt")
            if diag: A("s_add_u32 s63, s63, 1")
            softmax_item(f"a{par}")
            A(f"s_waitcnt vmcnt({7 if full else 4})")
            A("s_nop 0")
            pv_item(vcur)
            if not full:
                for s in range(3): A(f"global_load_dwordx4 {q4(VD+4*s)}, v9, s[8:9] offset:{128*s} nt")
        A("s_branch L_dyn0")

        g.lab("L_dyn_last")
        g.vm = []
        A("s_mov_b32 s59, 0")
        if w0:
            A(f"s_cmp_lt_u32 s32, {w0}"); A("s_cbranch_scc1 L_noflag2")
            A(f"ds_write_b32 v{vZero}, v{vOne} offset:{LDS_FLAG+4}")
        if wentry and not wdyn_early:
            A("s_cmp_lt_u32 s2, 240"); A("s_cbranch_scc0 L_noflag2")
            for i in range(NWL): w_load(i)
            A("s_mov_b32 s59, 1")
        g.lab("L_noflag2")
        A("s_nop 1")
        softmax_item("b")
        ml_write(False)
        A("s_cmp_eq_u32 s59, 0"); A("s_cbranch_scc0 L_vw5")
        A("s_waitcnt vmcnt(0)")
        g.lab("L_vw5")
        if full: A("s_cmp_eq_u32 s60, 0")
        A(f"s_waitcnt vmcnt({NWL})")
        if full:
            A("s_cbranch_scc0 L_pvl1")
            pv_item(VD)
            A("s_branch L_pvl2")
            g.lab("L_pvl1")
            pv_item(VD2)
            g.lab("L_pvl2")
        else:
            pv_item(VD)
        g.stamp(7)
        A("s_cmp_eq_u32 s59, 0"); A("s_cbranch_scc0 L_now")
        if w0 or not wentry:
            A("s_cmp_lt_u32 s2, 240"); A("s_cbranch_scc0 L_now")
            if wdyn_early: A(f"s_cmp_lt_u32 s32, {w0}"); A("s_cbranch_scc0 L_now")
            if w0: lds_wait("xwait", LDS_FLAG + 4, "v_cmp_eq_u32 vcc, 0, v54", 4)
            g.vm = []
            for i in range(NWL): w_load(i)
        g.lab("L_now")
        A("s_nop 3")
        owrite()
    else:
        idx = 0
        while nxt[0] < NSEQ:
            pv_step(idx, "C", None); idx += 1
        g.stamp(6)
        A("s_cmp_lt_u32 s2, 240"); A("s_cbranch_scc1 L_pvA")
        vm_save = list(g.vm)
        for i in range(idx, 24): pv_step(i, "B", None)
        A("s_branch L_pvdone")
        g.lab("L_pvA")
        g.vm = vm_save
        st = dict(w=0)
        if wall:
            for i in range(2): w_load(i); st["w"] += 1
        for i in range(idx, 24): pv_step(i, "A", st)
        while st["w"] < NWL:
            w_load(st["w"]); st["w"] += 1
        g.lab("L_pvdone")
        g.stamp(7)
        A("s_nop 5")
        owrite()

    def quad_reduce(scale):
        if scale and dyn:
            A(f"ds_read_b128 v[32:35], v{vZero} offset:{LDS_ML}")
            A(f"ds_read_b128 v[36:39], v{vZero} offset:{LDS_ML+16}")
            A(f"ds_read_b32 v50, v{vK4} offset:{LDS_ML}")
        A(f"ds_read_b128 v[40:43], v{vOr} offset:{LDS_O}")
        A(f"ds_read_b128 v[44:47], v{vOr} offset:{LDS_O + 640}")
        if scale and dyn:
            A(f"s_waitcnt lgkmcnt({0 if diag else 2})")
            A("v_max3_f32 v32, v32, v33, v34"); A("v_max3_f32 v35, v35, v36, v37")
            A("v_max3_f32 v32, v32, v38, v39"); A("v_max_f32 v32, v32, v35")
            A("v_sub_f32 v50, v50, v32")
            A("v_exp_f32 v50, v50")
        elif scale:
            A(f"ds_read_b32 v50, v{vK4} offset:{LDS_F}")
        A("s_waitcnt lgkmcnt(0)")
        for r in range(4): A(f"v_add_f32 v{40+r}, v{40+r}, v{44+r}")
        if scale:
            for r in range(4): A(f"v_mul_f32 v{40+r}, v{40+r}, v50")
        rows_reduce(40)
        A("s_mov_b32 s36, 0x00ff00ff")
        A("s_mov_b32 s37, 0x00ff00ff")
        A(f"v_add_f32_dpp v40, v40, v40 row_ror:8 {DPP}")
        A("v_bfi_b32 v40, v8, s34, v40")
        A("s_mov_b64 exec, s[36:37]")
    A("s_cmp_lt_u32 s32, 6")
    A("s_waitcnt lgkmcnt(0)")
    A("s_barrier")
    A("s_cbranch_scc0 L_nopub")
    quad_reduce(True)
    A(f"global_store_dword v{vOPst}, v40, s[28:29] {sf}")
    A("s_mov_b64 exec, -1")
    if dyn:
        A("s_branch L_pubdone")
        g.lab("L_nopub")
        A("s_cmp_eq_u32 s32, 6"); A("s_cbranch_scc0 L_pubdone")
        A("v_lshlrev_b32 v52, 2, v3")
        A(f"ds_read2_b32 v[42:43], v52 offset0:{LDS_ML//4} offset1:{LDS_ML//4+8}")
        A("s_lshl_b32 s36, s2, 7"); A(f"s_add_u32 s36, s36, {HDR_OFF}")
        A("v_mov_b32 v52, s36")
        A("s_waitcnt lgkmcnt(0)")
        A(f"v_max_f32_dpp v40, v42, v42 quad_perm:[1,0,3,2] {DPP}")
        A("s_nop 1")
        A(f"v_max_f32_dpp v40, v40, v40 quad_perm:[2,3,0,1] {DPP}")
        A("s_nop 1")
        A(f"v_max_f32_dpp v40, v40, v40 row_half_mirror {DPP}")
        A("v_sub_f32 v42, v42, v40")
        A("v_exp_f32 v42, v42")
        A("s_nop 0")
        A("v_mul_f32 v41, v42, v43")
        A("v_mov_b32 v42, s33"); A("v_mov_b32 v43, s33")
        for k, mode in enumerate(("quad_perm:[1,0,3,2]", "quad_perm:[2,3,0,1]", "row_half_mirror")):
            if k: A("s_nop 1")
            A(f"v_add_f32_dpp v41, v41, v41 {mode} {DPP}")
        A("s_mov_b64 exec, 1")
        A("global_store_dwordx4 v52, v[40:43], s[28:29] sc1")
        A("s_mov_b64 exec, -1")
        g.lab("L_pubdone")
    else:
        g.lab("L_nopub")
    g.stamp(8)
    A("s_cmp_lt_u32 s2, 240")
    A("s_barrier")
    A("s_cbranch_scc0 L_tailB")

    def ogather():
        A(f"global_load_dwordx4 v[32:35], v{vGat}, s[28:29] {pf}")
        if dyn: A(f"global_load_dwordx4 v[36:39], v{vGH}, s[28:29] sc1")
    ogather(); g.vm += ["og"] * (2 if dyn else 1)
    A(f"ds_read_b32 v{vHid}, v{vHid} offset:{LDS_HID}")
    A(f"ds_read_b64 v[{vG2}:{vG2+1}], v{vZero} offset:{LDS_G}")
    A("s_waitcnt lgkmcnt(0)")
    for r in range(4): A(f"v_and_b32 v{12+r}, v{vHid}, v{4+r}")
    g.wait(("W", 0))
    A("s_nop 0")
    A(f"v_mfma_f32_16x16x32_bf16 v[44:47], v[12:15], {q4(WB)}, 0")
    A("s_nop 7")
    for r in range(4): A(f"v_mul_f32 v{56+r}, v{vG2+1}, v{44+r}")
    A("s_waitcnt vmcnt(0)")
    g.lab("L_o_chk")
    tagcheck([32, 33, 34, 35], 52, fulltags=(38, 39) if dyn else ())
    retry("o", ogather)
    g.stamp(9)
    if dyn:
        A(f"v_max_f32_dpp v38, v36, v36 quad_perm:[1,0,3,2] {DPP}")
        A("s_nop 1")
        A(f"v_max_f32_dpp v38, v38, v38 quad_perm:[2,3,0,1] {DPP}")
        A("s_nop 1")
        A(f"v_max_f32_dpp v38, v38, v38 row_half_mirror {DPP}")
        A("v_sub_f32 v36, v36, v38")
        A("v_exp_f32 v36, v36")
        A("s_nop 0")
        for r in (37, 32, 33, 34, 35): A(f"v_mul_f32 v{r}, v{r}, v36")
        red8([37, 32, 33, 34, 35])
        A("v_rcp_f32 v37, v37")
        A("s_nop 0")
        for t in range(4): A(f"v_mul_f32 v{32+t}, v{32+t}, v37")
    elif copoll:
        rows_reduce(32, lead_nop=False)
        A("s_nop 1")
        A(f"v_add_f32_dpp v32, v32, v32 row_ror:8 {DPP}")
        A("v_cvt_pk_bf16_f32 v32, v32, v32")
        A(f"ds_write_b32 v{vG}, v32")
        A(f"ds_read_b128 v[32:35], v{vCnt}")
        A("s_waitcnt lgkmcnt(0)")
    else:
        red8([32, 33, 34, 35])
    if not copoll:
        for t in range(4): A(f"v_cvt_pk_bf16_f32 v{32+t}, v{32+t}, v{32+t}")
    areg = [12, 16, 36, 48]
    for t in range(4):
        for r in range(4): A(f"v_and_b32 v{areg[t]+r}, v{32+t}, v{4+r}")
        if t >= 1:
            A(f"v_mfma_f32_16x16x32_bf16 v[44:47], {q4(areg[t-1])}, {q4(WB+4*t)}, {'0' if t == 1 else 'v[44:47]'}")
    A("s_nop 0")
    A(f"v_mfma_f32_16x16x32_bf16 v[44:47], {q4(areg[3])}, {q4(WB+16)}, v[44:47]")
    A("s_nop 7")
    for r in range(4): A(f"v_fma_f32 v{44+r}, v{44+r}, v{vG2}, v{56+r}")
    A(f"ds_write_b128 v{vOw}, v[44:47] offset:{LDS_O}")
    A("s_cmp_lt_u32 s32, 2")
    A("s_waitcnt lgkmcnt(0)")
    A("s_barrier")
    A("s_cbranch_scc0 L_exitS")
    quad_reduce(False)
    A(f"global_store_dword v{vFP}, v40, s[28:29] {sf}")
    g.stamp(10)
    A("s_branch L_exitS")

    g.lab("L_tailB")
    if diag: A("s_barrier")
    A("s_sub_u32 s36, s2, 240"); A("s_lshl_b32 s37, s32, 4"); A("s_add_u32 s38, s36, s37")
    A("s_cmp_lt_u32 s38, 20"); A("s_cbranch_scc0 L_exitS")
    A("s_lshl_b32 s36, s38, 12"); A(f"s_add_u32 s36, s36, {FP_OFF}")
    A(f"v_add_u32 v{vGat}, s36, v{vL16}")
    A("v_and_b32 v52, 1, v3"); A("v_lshlrev_b32 v52, 4, v52")
    A("v_lshrrev_b32 v53, 4, v1"); A("v_lshl_add_u32 v52, v53, 2, v52")
    A("v_lshrrev_b32 v53, 1, v3")
    A("s_lshl_b32 s36, s38, 5")
    A(f"v_add3_u32 v{vFP}, v52, v53, s36")
    A(f"v_lshlrev_b32 v{vFP}, 1, v{vFP}")
    def fgather():
        for k in range(3): A(f"global_load_dwordx4 {q4(32+4*k)}, v{vGat}, s[28:29] offset:{1024*k} {pf}")
    g.stamp(9)
    fgather()
    A("s_waitcnt vmcnt(0)")
    g.lab("L_f_chk")
    tagcheck(range(32, 44), 52)
    retry("f", fgather)
    g.stamp(10)
    for r in range(4): A(f"v_add_f32 v{32+r}, v{32+r}, v{36+r}")
    for r in range(4): A(f"v_add_f32 v{32+r}, v{32+r}, v{40+r}")
    rows_reduce(32)
    A("s_mov_b32 s36, 0x00ff00ff"); A("s_mov_b32 s37, 0x00ff00ff")
    A(f"v_add_f32_dpp v32, v32, v32 row_ror:8 {DPP}")
    A("v_cvt_pk_bf16_f32 v32, v32, v32")
    A("s_mov_b64 exec, s[36:37]")
    A(f"global_store_short v{vFP}, v32, s[24:25] {of}")
    A("s_cmp_lg_u32 s38, 0"); A("s_cbranch_scc1 L_exitS")
    A("s_mov_b64 exec, 1")
    A("v_mov_b32 v53, s33")
    A(f"global_store_dword v{vZero}, v53, s[28:29] {of}")
    if leak:
        i, j, mult = leak
        g.stamp(11)
        A("s_waitcnt lgkmcnt(0)")
        A(f"s_sub_u32 s36, s{64+2*j}, s{64+2*i}")
        A(f"s_mul_i32 s36, s36, {mult}")
        A("s_min_u32 s36, s36, 100000")
        g.lab("L_leak")
        A("s_memrealtime s[54:55]")
        A("s_waitcnt lgkmcnt(0)")
        A("s_sub_u32 s37, s54, s86")
        A("s_cmp_lt_u32 s37, s36")
        A("s_cbranch_scc1 L_leak")
    g.lab("L_exitS")
    if diag: A("s_add_u32 s32, s32, 4"); A("s_branch L_exit")
    else: A("s_endpgm")

    g.lab("L_service")
    g.vm = list(svc_vm)
    common_consts()
    A("s_mul_i32 s36, s30, 10240"); A(f"s_add_u32 s36, s36, {QP_OFF}")
    A("s_add_u32 s44, s28, s36"); A("s_addc_u32 s45, s29, 0")
    A("s_mul_i32 s36, s51, 86"); A("s_lshr_b32 s36, s36, 8")
    A("s_mul_i32 s37, s36, 3"); A("s_sub_u32 s58, s51, s37")
    A("s_mul_i32 s36, s36, 40960"); A(f"s_add_u32 s36, s36, {QP_OFF + 6144}")
    A("s_lshr_b32 s37, s58, 1"); A("s_mul_i32 s37, s37, 10240"); A("s_add_u32 s36, s36, s37")
    A("s_and_b32 s58, s58, 1"); A("s_lshl_b32 s37, s58, 11"); A("s_add_u32 s36, s36, s37")
    A("s_add_u32 s54, s28, s36"); A("s_addc_u32 s55, s29, 0")
    A("s_add_u32 s56, s54, 20480"); A("s_addc_u32 s57, s55, 0")
    A("s_lshl_b32 s36, s30, 10"); A(f"s_add_u32 s36, s36, {HDR_OFF}")
    A("s_add_u32 s42, s28, s36"); A("s_addc_u32 s43, s29, 0")
    A("s_mov_b32 s47, 0x01000100"); A("s_mov_b32 s48, 0x03020302")
    A("s_lshl_b32 s36, s32, 11")
    A("s_lshl_b32 s37, s31, 8"); A("s_add_u32 s36, s36, s37")
    A("v_lshrrev_b32 v53, 4, v1")
    A("v_lshlrev_b32 v53, 6, v53")
    A("v_lshl_add_u32 v54, v3, 3, v53")
    A("v_add_u32 v54, s36, v54")
    def pstep(t, preg, xreg, sel, first):
        a = 12 + 4 * (t & 1)
        A(f"v_perm_b32 v52, v{xreg}, v{xreg}, s{sel}")
        for r in range(4): A(f"v_and_b32 v{a+r}, v52, v{4+r}")
        A("s_nop 1")
        A(f"v_mfma_f32_16x16x32_bf16 v[40:43], {q4(a)}, {q4(preg)}, {'0' if first else 'v[40:43]'}")
    def ppublish(off):
        A("s_nop 7")
        A("v_permlane32_swap_b32 v40, v42")
        A("v_permlane32_swap_b32 v41, v43")
        A("s_nop 1")
        A(f"v_add_f32_dpp v44, v42, v40 row_ror:8 {DPP}")
        A(f"v_add_f32_dpp v45, v43, v41 row_ror:8 {DPP}")
        A("v_bfi_b32 v44, v8, s34, v44")
        A("v_bfi_b32 v45, v8, s34, v45")
        A("s_mov_b32 exec_lo, 0x00ff00ff"); A("s_mov_b32 exec_hi, 0x00ff00ff")
        A(f"global_store_dwordx2 v54, v[44:45], s[44:45] offset:{off} sc1")
        A("s_mov_b64 exec, -1")
    for t in range(10):
        g.wait(("P", t))
        pstep(t, PB + 4 * t, 20 + t // 2, 47 + (t & 1), t == 0)
    A("s_waitcnt lgkmcnt(0)")
    A("s_add_u32 s33, s33, 1"); A("s_and_b32 s34, s33, 0xff")
    ppublish(0)
    g.stamp(1)
    GR = 128
    vA, vB = 30, 31
    A("s_cmp_eq_u32 s32, 1"); A("s_cbranch_scc1 L_jobH")
    A("s_cmp_eq_u32 s32, 2"); A("s_cbranch_scc1 L_jobG")
    A("s_cmp_eq_u32 s32, 3"); A("s_cbranch_scc1 L_jobF")
    A("v_min_u32 v54, 47, v1")
    A("v_lshrrev_b32 v53, 4, v54")
    A("v_and_b32 v52, 15, v54")
    A("v_lshlrev_b32 v52, 4, v52")
    A(f"v_lshl_add_u32 v{vA}, v53, 11, v52")
    A("v_lshlrev_b32 v55, 7, v53")
    A("v_and_b32 v56, 3, v54"); A("v_lshl_add_u32 v55, v56, 5, v55")
    A("v_bfe_u32 v56, v54, 2, 1"); A("v_lshl_add_u32 v55, v56, 3, v55")
    A("v_bfe_u32 v56, v54, 3, 1"); A("v_lshl_add_u32 v55, v56, 2, v55")
    def qgather():
        for p in range(8): A(f"global_load_dwordx4 {q4(GR+4*p)}, v{vA}, s[44:45] offset:{p*256} sc1")
    A("s_waitcnt vmcnt(0)")
    qgather()
    A("s_waitcnt vmcnt(0)")
    g.lab("L_q_chk")
    tagcheck(range(GR, GR + 32), 52)
    retry("q", qgather, sleep=psleep)
    for st in (16, 8, 4):
        for r in range(st): A(f"v_add_f32 v{GR+r}, v{GR+r}, v{GR+st+r}")
    A(f"v_cvt_pk_bf16_f32 v52, v{GR}, v{GR+1}")
    A(f"v_cvt_pk_bf16_f32 v53, v{GR+2}, v{GR+3}")
    A(f"ds_write2_b32 v55, v52, v53 offset0:{LDS_Q//4} offset1:{LDS_Q//4+4}")
    A(f"ds_write_b32 v{vZero}, v{vOne} offset:{LDS_FLAG}")
    g.stamp(2)
    A("s_branch L_svc_done")
    g.lab("L_jobH")
    A("s_mul_i32 s36, s58, 10240")
    A(f"v_add_u32 v{vB}, s36, v{vL16}")
    A("s_cmp_eq_u32 s58, 0"); A("s_cselect_b32 s59, 0, 1.0")
    A("v_and_b32 v52, 15, v1"); A("v_lshrrev_b32 v53, 4, v1"); A("v_lshl_add_u32 v52, v52, 2, v53")
    A("v_bfe_u32 v53, v52, 1, 3"); A(f"v_lshlrev_b32 v{vA}, 5, v53")
    A("v_bfe_u32 v53, v52, 4, 1"); A(f"v_lshl_add_u32 v{vA}, v53, 4, v{vA}")
    A("v_bfe_u32 v53, v52, 5, 1"); A(f"v_lshl_add_u32 v{vA}, v53, 3, v{vA}")
    A("v_and_b32 v53, 1, v52"); A(f"v_lshl_add_u32 v{vA}, v53, 2, v{vA}")
    lds_wait("hwait", LDS_FLAG, "v_cmp_eq_u32 vcc, 0, v54", 16)
    def hgather():
        for m, sb in enumerate(("s[54:55]", "s[56:57]")):
            for a, va in enumerate((vL16, vB)):
                for k in range(2):
                    A(f"global_load_dwordx4 {q4(GR + 16*m + 8*a + 4*k)}, v{va}, {sb} offset:{1024*k} sc1")
    hgather()
    A("s_waitcnt vmcnt(0)")
    g.lab("L_h_chk")
    tagcheck(range(GR, GR + 32), 52)
    retry("h", hgather, sleep=4 * psleep)
    for m in range(2):
        b = GR + 16 * m
        for r in range(4): A(f"v_add_f32 v{b+r}, v{b+r}, v{b+4+r}")
        for r in range(4): A(f"v_add_f32 v{b+8+r}, v{b+8+r}, v{b+12+r}")
        for r in range(4): A(f"v_fma_f32 v{b+r}, v{b+8+r}, s59, v{b+r}")
    for m in range(2): rows_reduce(GR + 16 * m)
    bf16r(52, GR); bf16r(53, GR + 16)
    A("v_mul_f32 v54, v52, v52")
    A(f"v_mov_b32 v55, {f2u(0.044715):#x}")
    A("v_fma_f32 v54, v54, v55, 1.0")
    A("v_mul_f32 v54, v54, v52")
    A(f"v_mul_f32 v54, {f2u(-2 * 0.7978845608028654 * LOG2E):#x}, v54")
    A("v_exp_f32 v54, v54")
    A("s_nop 0")
    A("v_add_f32 v54, 1.0, v54")
    A("v_rcp_f32 v54, v54")
    A("s_nop 0")
    A("v_mul_f32 v54, v54, v52")
    bf16r(54, 54)
    A("v_mul_f32 v54, v54, v53")
    A("v_cvt_pk_bf16_f32 v54, v54, v54")
    A(f"ds_write_b32 v{vA}, v54 offset:{LDS_HID}")
    g.stamp(2)
    A("s_branch L_svc_done")
    g.lab("L_jobG")
    A("v_mul_u32_u24 v53, 20, v1")
    A(f"global_load_dwordx4 {q4(GR)}, v53, s[4:5]" + SNT)
    A(f"global_load_dword v{GR+4}, v53, s[4:5] offset:16" + SNT)
    A(f"global_load_dwordx4 {q4(GR+6)}, v53, s[22:23]" + SNT)
    A(f"global_load_dword v{GR+10}, v53, s[22:23] offset:16" + SNT)
    if prefetch_code:
        A("s_getpc_b64 s[36:37]")
        g.lab("L_pc")
        A(f"s_sub_u32 s36, s36, L_pc-{KN}"); A("s_subb_u32 s37, s37, 0")
        A("v_lshlrev_b32 v53, 7, v1")
        A("v_add_u32 v53, 1024, v53")
        A(f"v_min_u32 v53, L_end-{KN}, v53")
        A("global_load_dword v31, v53, s[36:37]")
    A("v_mov_b32 v56, 0")
    A("s_waitcnt vmcnt(0)")
    for i in range(5):
        xr = GR + i; wr = GR + 6 + i
        A(f"v_lshlrev_b32 v52, 16, v{xr}"); A(f"v_and_b32 v53, 0xffff0000, v{xr}")
        A(f"v_lshlrev_b32 v54, 16, v{wr}"); A(f"v_and_b32 v55, 0xffff0000, v{wr}")
        A("v_mul_f32 v52, v52, v54"); A("v_mul_f32 v53, v53, v55")
        A("v_cvt_pk_bf16_f32 v52, v52, v53")
        A("v_lshlrev_b32 v53, 16, v52"); A("v_and_b32 v52, 0xffff0000, v52")
        A("v_add_f32 v56, v56, v53"); A("v_add_f32 v56, v56, v52")
    red64(56, "v_add_f32")
    A("s_nop 0")
    A("v_readlane_b32 s36, v56, 63")
    A("s_nop 1")
    A("v_mov_b32 v56, s36")
    bf16r(56, 56)
    A(f"v_mul_f32 v56, {f2u(-LOG2E):#x}, v56")
    A("v_exp_f32 v56, v56")
    A("s_nop 0")
    A("v_add_f32 v56, 1.0, v56")
    A("v_rcp_f32 v56, v56")
    A("s_nop 0")
    bf16r(56, 56)
    A("v_sub_f32 v57, 1.0, v56")
    bf16r(57, 57)
    A(f"ds_write_b64 v{vZero}, v[56:57] offset:{LDS_G}")
    g.stamp(2)
    A("s_branch L_svc_done")
    g.lab("L_jobF")
    A("s_cmp_eq_u32 s39, 0"); A("s_cselect_b32 s47, s47, s48")
    A("s_waitcnt vmcnt(1)")
    for t in range(5): pstep(t, PB + 40 + 4 * t, 20 + t, 47, t == 0)
    ppublish(2048)
    g.stamp(3)
    if not dyn:
        A("v_lshlrev_b32 v55, 2, v3")
        lds_wait("fwait", LDS_FLAG + 4, "v_cmp_ne_u32 vcc, 8, v54", 8)
        A(f"ds_read2_b32 v[56:57], v55 offset0:{LDS_ML//4} offset1:{LDS_ML//4+8}")
        A("v_mov_b32 v58, s33"); A("v_mov_b32 v59, s33")
        A("s_lshl_b32 s36, s31, 7")
        A(f"v_add_u32 v52, s36, v{vL16}")
        A("s_waitcnt lgkmcnt(0)")
        A("s_mov_b64 exec, 0xff")
        A("global_store_dwordx4 v52, v[56:59], s[42:43] sc1")
        A("s_mov_b64 exec, -1")
        g.stamp(3)
        def hdrgather(): A(f"global_load_dwordx4 {q4(GR)}, v{vL16}, s[42:43] sc1")
        A("s_waitcnt vmcnt(0)")
        hdrgather()
        A("s_waitcnt vmcnt(0)")
        g.lab("L_hd_chk")
        A(f"v_xor_b32 v52, s33, v{GR+2}"); A(f"v_xor_b32 v53, s33, v{GR+3}")
        A("v_or_b32 v52, v52, v53")
        A("v_cmp_ne_u32 vcc, 0, v52")
        retry("hd", hdrgather, sleep=psleep)
        A(f"v_mov_b32 v52, v{GR}")
        red64(52, "v_max_f32")
        A("s_nop 0")
        A("v_readlane_b32 s36, v52, 63")
        A("s_nop 1")
        A(f"v_subrev_f32 v52, s36, v{GR}")
        A("v_exp_f32 v52, v52")
        A("s_nop 0")
        A(f"v_mul_f32 v53, v52, v{GR+1}")
        red64(53, "v_add_f32")
        A("v_rcp_f32 v53, v53")
        A("s_nop 0")
        A("v_readlane_b32 s36, v53, 63")
        A("v_cmp_eq_u32 vcc, s31, v2")
        A("s_nop 0")
        A("v_mul_f32 v52, s36, v52")
        A("s_mov_b64 exec, vcc")
        A(f"ds_write_b32 v55, v52 offset:{LDS_F}")
        A("s_mov_b64 exec, -1")
    g.stamp(2)

    g.lab("L_svc_done")
    A("s_waitcnt lgkmcnt(0)")
    A("s_barrier")
    KB = 64
    if diag: A("s_barrier"); A("s_barrier"); A("s_mov_b32 s63, 0")
    g.lab("L_exit")
    if diag and not leak:
        g.stamp(11)
        g.lab("L_dwait")
        A("s_sleep 32")
        A("s_memrealtime s[54:55]")
        A("s_waitcnt lgkmcnt(0)")
        A("s_sub_u32 s37, s54, s64")
        A("s_cmp_lt_u32 s37, 3500")
        A("s_cbranch_scc1 L_dwait")
        A("s_mov_b64 exec, 1")
        A("s_mul_i32 s36, s2, 12"); A("s_add_u32 s36, s36, s32"); A("s_lshl_b32 s36, s36, 7")
        A(f"s_add_u32 s36, s36, {STAMP_OFF}")
        if wsbase: A(f"s_sub_u32 s28, s28, {wsbase}"); A("s_subb_u32 s29, s29, 0")
        A("v_mov_b32 v52, s36")
        A("s_getreg_b32 s37, hwreg(HW_REG_XCC_ID)")
        A("s_waitcnt lgkmcnt(0)")
        A("s_mov_b32 s88, s46"); A("s_mov_b32 s89, s37"); A("s_mov_b32 s90, s63")
        for k in range(8):
            for r in range(4): A(f"v_mov_b32 v{KB+4*k+r}, s{64+4*k+r}")
            A(f"global_store_dwordx4 v52, {q4(KB+4*k)}, s[28:29] offset:{16*k}")
    g.lab("L_end")
    A("s_endpgm")
    L.append('.section .rodata,"a"'); L.append(".p2align 6"); L.append(f".amdhsa_kernel {KN}")
    L.append("  .amdhsa_next_free_vgpr 168")
    L.append("  .amdhsa_next_free_sgpr 96")
    L.append("  .amdhsa_accum_offset 168")
    L.append("  .amdhsa_group_segment_fixed_size 0"); L.append("  .amdhsa_kernarg_size 104")
    L.append("  .amdhsa_user_sgpr_count 2"); L.append("  .amdhsa_user_sgpr_kernarg_segment_ptr 1")
    L.append("  .amdhsa_system_sgpr_workgroup_id_x 1")
    L.append("  .amdhsa_float_denorm_mode_32 3")
    L.append(".end_amdhsa_kernel")
    return "\n".join(L) + "\n"

if __name__ == "__main__":
    import argparse, hazard, ast
    ap = argparse.ArgumentParser()
    ap.add_argument("-o", default="gated_mix__sliding_block_cached__geglu_ffn__decode.s")
    ap.add_argument("kv", nargs="*")
    a = ap.parse_args()
    kw = {}
    for x in a.kv:
        k, v = x.split("="); kw[k] = ast.literal_eval(v)
    t = gen(**kw)
    open(a.o, "w").write(t)
    pr = hazard.check(t)
    for x in pr: print(x)
    print(len(pr), "hazard findings")
```

```python
import sys, struct
KN = "gated_mix__sliding_block_cached__geglu_ffn__decode_kernel"

QP_OFF = 4096
HDR_OFF = QP_OFF + 32 * 10240
CNT_OFF = HDR_OFF + 32 * 1024
OP_OFF = CNT_OFF + 32 * 1024
FP_OFF = OP_OFF + 192 * 1024
STAMP_OFF = 1 << 22

LDS_Q = 0
LDS_G = 384
LDS_FLAG = 392
LDS_F = 400
LDS_ML = 448
LDS_HID = 512
LDS_O = 768
OSTR = 3 * 1280 + 128
LDS_BYTES = LDS_O + 8 * OSTR

def f2u(f): return struct.unpack("<I", struct.pack("<f", f))[0]
LOG2E = 1.4426950408889634

HEADER = open("gated_mix__sliding_block_cached__geglu_ffn__decode.s.ref").read().split("; Override")[0]

class G:
    def __init__(s, diag=False):
        s.L = []; s.vm = []; s.diag = diag
    def A(s, x): s.L.append("    " + x)
    def lab(s, x): s.L.append(x + ":")
    def c(s, x): s.L.append("    ; " + x)
    def vmem(s, x, tag=None):
        s.A(x); s.vm.append(tag)
    def wait(s, tag):
        idx = max(i for i, t in enumerate(s.vm) if t == tag)
        n = len(s.vm) - 1 - idx
        s.A(f"s_waitcnt vmcnt({n})")
    def stamp(s, i):
        if s.diag: s.A(f"s_memrealtime s[{64+2*i}:{65+2*i}]")

def q4(b): return f"v[{b}:{b+3}]"
DPP = "row_mask:0xf bank_mask:0xf"

def gen(D=3, diag=False, spin=200000, prefetch_code=False, q1pos=21, rot=37, leak=None, psleep=8, wsbase=0,
        dyn=True, w0=4, b0early=True, full=True, wentry=True, layout='inter', snt=True, prio=0, pf='sc1', sf='sc1', pdepth=0, b0late=True, wdyn_early=False, of='', copoll=True, wall=False, outwarm=True, uq=True, pipe=0):
    g = G(diag); A = g.A
    L = g.L
    B1 = 64; B2 = 112
    vZero, vOne = 60, 61
    vM, vL = 62, 63
    vL16, vOw, vG, vCnt, vK4 = 160, 161, 162, 163, 164
    if dyn:
        KD, VD, VD2 = 64, 76, 88
        WB = B2
        TA = 100
    else:
        WB = B1
        TA = 20
    vWoA, vWoB, vWd, vOPst, vGat, vGH, vFP, vHid, vOr, vG2 = TA, TA + 1, TA + 2, TA + 3, TA + 4, TA + 5, TA + 6, TA + 7, TA + 8, TA + 10
    S = 4
    NDYN = 512 - 64 * (S + 1)
    L.append(HEADER.rstrip())
    L.append(f"; @launch grid=(256,1,1) block=(768,1,1) lds={LDS_BYTES}")
    L.append('.amdgcn_target "amdgcn-amd-amdhsa--gfx950"')
    L.append(".text"); L.append(f".globl {KN}"); L.append(".p2align 8"); L.append(f".type {KN},@function")
    g.lab(KN)
    A("s_cmp_ge_u32 s2, 256"); A("s_cbranch_scc1 L_end")
    A("s_load_dwordx16 s[4:19], s[0:1], 0")
    A("s_load_dwordx8 s[20:27], s[0:1], 64")
    A("s_load_dwordx2 s[28:29], s[0:1], 96")
    g.stamp(0)
    A("v_lshrrev_b32 v52, 6, v0")
    A("v_and_b32 v1, 63, v0")
    A("v_readfirstlane_b32 s32, v52")
    A("v_lshrrev_b32 v2, 3, v1")
    A("v_and_b32 v3, 7, v1")
    A(f"v_mov_b32 v{vZero}, 0")
    A("s_lshr_b32 s30, s2, 3")
    A("s_and_b32 s31, s2, 7")
    A(f"ds_write2_b32 v{vZero}, v{vZero}, v{vZero} offset0:{LDS_FLAG//4} offset1:{LDS_FLAG//4+1}")
    A("s_cmp_lt_u32 s32, 4")
    A("s_cbranch_scc0 L_stream")

    def common_consts():
        A("s_mul_i32 s51, s30, 205"); A("s_lshr_b32 s51, s51, 11")
        A("s_mul_i32 s52, s51, 10"); A("s_sub_u32 s52, s30, s52")
        A("s_mul_i32 s36, s31, 3"); A("s_add_u32 s51, s51, s36")
        A("s_min_u32 s51, s51, 23")
        A("v_and_b32 v52, 1, v1")
        A("v_mov_b32 v53, 0xffff")
        A("v_lshlrev_b32 v52, 4, v52")
        A("v_lshlrev_b32 v53, v52, v53")
        A("v_lshrrev_b32 v52, 1, v3")
        for r in range(4):
            A(f"v_cmp_eq_u32 vcc, {r}, v52")
            A("s_nop 1")
            A(f"v_cndmask_b32 v{4+r}, 0, v53, vcc")
        A("v_mov_b32 v8, 0xff")
        A(f"v_mov_b32 v{vOne}, 1")
        A(f"s_mov_b32 s46, {spin}")
        A(f"v_lshlrev_b32 v{vL16}, 4, v1")
        A(f"v_lshlrev_b32 v{vK4}, 2, v2")

    def retry(name, reload_fn, sleep=0):
        A("s_cmp_eq_u64 vcc, 0")
        A(f"s_cbranch_scc1 L_{name}_ok")
        A("s_sub_u32 s46, s46, 1"); A("s_cbranch_scc1 L_%s_ok" % name)
        if sleep: A(f"s_sleep {sleep}")
        reload_fn()
        A("s_waitcnt vmcnt(0)")
        A(f"s_branch L_{name}_chk")
        g.lab(f"L_{name}_ok")

    def tagcheck(rlist, tmp, fulltags=()):
        for r in rlist: A(f"v_xor_b32 v{r}, s34, v{r}")
        for r in fulltags: A(f"v_xor_b32 v{r}, s33, v{r}")
        rl = list(rlist)
        A(f"v_or3_b32 v{tmp}, v{rl[0]}, v{rl[1]}, v{rl[2]}"); rl = rl[3:]
        while len(rl) >= 2:
            A(f"v_or3_b32 v{tmp}, v{tmp}, v{rl[0]}, v{rl[1]}"); rl = rl[2:]
        if rl: A(f"v_or_b32 v{tmp}, v{tmp}, v{rl[0]}")
        A(f"v_and_b32 v{tmp}, v8, v{tmp}")
        if fulltags: A(f"v_or3_b32 v{tmp}, v{tmp}, v{fulltags[0]}, v{fulltags[1]}")
        A(f"v_cmp_ne_u32 vcc, 0, v{tmp}")

    def red8(regs, op="v_add_f32"):
        for mode in ("quad_perm:[1,0,3,2]", "quad_perm:[2,3,0,1]", "row_half_mirror"):
            if len(regs) < 3: A(f"s_nop {2 - len(regs)}")
            for r in regs: A(f"{op}_dpp v{r}, v{r}, v{r} {mode} {DPP}")

    def bf16r(dst, src):
        A(f"v_cvt_pk_bf16_f32 v{dst}, v{src}, v{src}")
        A(f"v_and_b32 v{dst}, 0xffff0000, v{dst}")

    def red64(r, op):
        for mode in ("quad_perm:[1,0,3,2]", "quad_perm:[2,3,0,1]", "row_half_mirror", "row_mirror"):
            A("s_nop 1"); A(f"{op}_dpp v{r}, v{r}, v{r} {mode} {DPP}")
        A("s_nop 1"); A(f"{op}_dpp v{r}, v{r}, v{r} row_bcast:15 row_mask:0xa bank_mask:0xf")
        A("s_nop 1"); A(f"{op}_dpp v{r}, v{r}, v{r} row_bcast:31 row_mask:0xc bank_mask:0xf")

    def red8groups(r, op):
        A("s_nop 1"); A(f"{op}_dpp v{r}, v{r}, v{r} row_ror:8 {DPP}")
        A("s_nop 1"); A(f"{op}_dpp v{r}, v{r}, v{r} row_bcast:15 row_mask:0xa bank_mask:0xf")
        A("s_nop 1"); A(f"{op}_dpp v{r}, v{r}, v{r} row_bcast:31 row_mask:0xc bank_mask:0xf")

    def rows_reduce(b, lead_nop=True):
        if lead_nop: A("s_nop 0")
        A(f"v_permlane32_swap_b32 v{b}, v{b+2}")
        A(f"v_permlane32_swap_b32 v{b+1}, v{b+3}")
        A(f"v_add_f32 v{b}, v{b}, v{b+2}")
        A(f"v_add_f32 v{b+1}, v{b+1}, v{b+3}")
        A("s_nop 1")
        A(f"v_permlane16_swap_b32 v{b}, v{b+1}")
        A(f"v_add_f32 v{b}, v{b}, v{b+1}")

    def ws_epoch():
        if wsbase: A(f"s_add_u32 s28, s28, {wsbase}"); A("s_addc_u32 s29, s29, 0")
        A("s_load_dword s33, s[28:29], 0")

    def lds_wait(name, off, cond, sleep):
        g.lab(f"L_{name}")
        A(f"ds_read_b32 v54, v{vZero} offset:{off}")
        A("s_waitcnt lgkmcnt(0)")
        A(cond)
        A("s_cmp_eq_u64 vcc, 0")
        A(f"s_cbranch_scc1 L_{name}_ok")
        A(f"s_sleep {sleep}")
        A(f"s_branch L_{name}")
        g.lab(f"L_{name}_ok")

    SNT = " nt" if snt else ""
    PB = 64
    A("s_mul_i32 s36, s30, 384"); A("s_lshl_b32 s37, s32, 7"); A("s_add_u32 s36, s36, s37")
    A("s_lshr_b32 s37, s30, 2"); A("s_mul_i32 s37, s37, 384")
    A("s_and_b32 s39, s30, 1")
    A("s_lshl_b32 s38, s39, 8")
    A("s_add_u32 s37, s37, s38")
    A("s_cmp_lt_u32 s32, 3")
    A("s_cselect_b32 s36, s36, s37")
    A("s_movk_i32 s38, 3072")
    A("s_cselect_b32 s38, 12288, s38")
    A("s_mul_i32 s37, s31, 80")
    A("v_mul_u32_u24 v52, 10, v2")
    A("v_add_u32 v52, s37, v52")
    A("v_lshlrev_b32 v53, 1, v52")
    A("v_mul_u32_u24 v52, s38, v52")
    A("v_lshl_add_u32 v52, v3, 4, v52")
    A("s_mul_i32 s47, s39, 2816"); A("s_add_u32 s47, s47, 128")
    A("v_add_u32 v54, s47, v52")
    A("s_waitcnt lgkmcnt(0)")
    if not b0late: A("s_barrier")
    g.vmem("global_load_dwordx4 v[20:23], v53, s[4:5]" + SNT, "x0")
    g.vmem("global_load_dword v24, v53, s[4:5] offset:16" + SNT, "x1")
    A("s_bitcmp1_b32 s30, 1")
    A("s_cselect_b32 s40, s18, s16"); A("s_cselect_b32 s41, s19, s17")
    A("s_cmp_lt_u32 s32, 3")
    A("s_cselect_b32 s40, s10, s40"); A("s_cselect_b32 s41, s11, s41")
    A("s_add_u32 s40, s40, s36"); A("s_addc_u32 s41, s41, 0")
    ws_epoch()
    if dyn:
        A("s_or_b32 s36, s31, s32"); A("s_cmp_lg_u32 s36, 0"); A("s_cbranch_scc1 L_noinit")
        A("s_lshl_b32 s36, s30, 10"); A(f"s_add_u32 s36, s36, {CNT_OFF}")
        A("v_mov_b32 v53, s36")
        A("s_mov_b64 exec, 1")
        A(f"global_store_dword v53, v{vZero}, s[28:29] sc1")
        A("s_mov_b64 exec, -1")
        g.lab("L_noinit")
    for t in range(10):
        if pdepth and t >= pdepth: g.wait(("P", t - pdepth))
        g.vmem(f"global_load_dwordx4 {q4(PB+4*t)}, v52, s[40:41] nt", ("P", t))
        if t < 9: A("v_add_u32 v52, s38, v52")
    if b0late: A("s_barrier")
    A("s_cmp_lt_u32 s32, 3"); A("s_cbranch_scc1 L_service")
    for t in range(5):
        A(f"global_load_dwordx4 {q4(PB+40+4*t)}, v54, s[40:41] nt")
        if t < 4: A("v_add_u32 v54, 6144, v54")
    A("s_branch L_service")
    svc_vm = list(g.vm); g.vm = []

    g.lab("L_stream")
    if prio: A(f"s_setprio {prio}")
    A("s_sub_u32 s32, s32, 4")
    A("v_mul_u32_u24 v10, 384, v2")
    A("v_lshl_add_u32 v10, v3, 4, v10")
    A("s_lshl_b32 s36, s31, 3"); A("s_add_u32 s36, s36, s32")
    if layout == "blk": A("s_lshl_b32 s36, s36, 3")
    IST = 64 if layout == "inter" else 1
    A(f"s_mul_i32 s61, s30, {rot}")
    A("s_add_u32 s62, s61, s36")
    A("s_mul_i32 s35, s30, 12582912")
    A(f"s_add_u32 s35, s35, {28672*384}")
    if dyn: seq = [("K", t) for t in range(12)] + [("V", t) for t in range(12)] + [("Kd", t) for t in range(3)] + [("Vd", t) for t in range(3)]
    else: seq = [("K", t) for t in range(24)] + [("V", t) for t in range(24)]
    NSEQ = len(seq)
    cur = [None]
    def item_addr(item):
        A(f"s_add_u32 s36, s62, {IST * item}"); A("s_and_b32 s36, s36, 511"); A("s_mul_i32 s36, s36, 3072")
        A("v_add_u32 v9, s36, v10"); cur[0] = item
    pv_idx = [-1]
    NWL = 5
    def w_load(i):
        if i == 0: g.vmem(f"global_load_dwordx4 {q4(WB)}, v{vWd}, s[20:21] nt", ("W", 0))
        else: g.vmem(f"global_load_dwordx4 {q4(WB+4*i)}, v{vWoA if i < 3 else vWoB}, s[12:13] offset:{-2560 if i & 1 else 2560} nt", ("W", i))
    def kreg(idx): return B1 + 4 * idx
    def vreg(idx): return (B2 if dyn else B1) + 4 * idx
    def grab():
        A("s_mov_b64 exec, 1")
        A(f"global_atomic_add v{vG}, v{vCnt}, v{vOne}, s[28:29] sc0 sc1")
        A("s_mov_b64 exec, -1")
    def issue(pos):
        kind, idx = seq[pos]
        if kind in ("K", "V"): item, s = divmod(idx, 3)
        else: item, s = S, idx
        if cur[0] != item: item_addr(item)
        if (kind, idx) == ("Kd", 0):
            if w0:
                A(f"v_mov_b32 v{vG}, {NDYN}")
                A(f"s_cmp_lt_u32 s32, {w0}"); A("s_cbranch_scc1 L_nograb")
            if wdyn_early:
                assert pv_idx[0] >= 5
                A("s_cmp_lt_u32 s2, 240"); A("s_cbranch_scc0 L_nowe")
                sv = list(g.vm)
                for i in range(NWL): w_load(i)
                g.vm = sv
                g.lab("L_nowe")
            grab()
            if w0: g.lab("L_nograb")
        reg = kreg(idx) if kind == "K" else vreg(idx) if kind == "V" else (KD if kind == "Kd" else VD) + 4 * idx
        base = "s[6:7]" if kind[0] == "K" else "s[8:9]"
        g.vmem(f"global_load_dwordx4 {q4(reg)}, v9, {base} offset:{s*128} nt", (kind, idx))
    item_addr(0)
    A("s_waitcnt lgkmcnt(0)")
    if not b0late: A("s_barrier")
    A("s_add_u32 s6, s6, s35"); A("s_addc_u32 s7, s7, 0")
    for t in range(D): issue(t)
    A("s_add_u32 s8, s8, s35"); A("s_addc_u32 s9, s9, 0")
    ws_epoch()
    if b0late: A("s_barrier")
    common_consts()
    A(f"s_mov_b32 s49, {f2u(192 ** -0.5):#x}")
    A(f"s_mov_b32 s50, {f2u(LOG2E):#x}")
    A(f"s_mul_i32 s36, s32, {OSTR}")
    A(f"v_add_u32 v{vOw}, s36, v{vL16}")
    A("v_lshrrev_b32 v52, 4, v1"); A(f"v_lshl_add_u32 v{vOw}, v52, 6, v{vOw}")
    A("s_lshl_b32 s53, s51, 3"); A("s_add_u32 s53, s53, s32")
    A("s_lshl_b32 s37, s52, 7")
    A("s_mul_i32 s36, s53, 40960"); A("s_add_u32 s36, s36, s37")
    A("s_add_u32 s12, s12, s36"); A("s_addc_u32 s13, s13, 0")
    A("s_mul_i32 s36, s53, 10240"); A("s_add_u32 s36, s36, s37")
    A("s_add_u32 s20, s20, s36"); A("s_addc_u32 s21, s21, 0")
    A("s_lshl_b32 s36, s30, 10"); A(f"s_add_u32 s36, s36, {CNT_OFF}")
    A(f"v_mov_b32 v{vCnt}, s36")
    NG = 4 if dyn else 8
    for gg in range(NG): A(f"v_mov_b32 v{32+gg}, 0")
    for r in range(12): A(f"v_mov_b32 v{40+r}, 0")
    g.stamp(1)
    nxt = [D]
    def slot(limit=None):
        if nxt[0] < (limit or NSEQ):
            g.wait(seq[nxt[0] - D]); issue(nxt[0]); nxt[0] += 1
    assert 12 + D <= q1pos <= 24
    while nxt[0] < q1pos: slot()
    g.stamp(2)
    A("v_lshlrev_b32 v52, 4, v3")
    g.lab("L_qwait")
    A(f"ds_read_b32 v54, v{vZero} offset:{LDS_FLAG}")
    for s in range(3): A(f"ds_read_b128 {q4(20+4*s)}, v52 offset:{LDS_Q + 128*s}")
    A("s_waitcnt lgkmcnt(0)")
    A("v_cmp_eq_u32 vcc, 0, v54")
    A("s_cmp_eq_u64 vcc, 0")
    A("s_cbranch_scc1 L_qready")
    A("s_sleep 2")
    A("s_branch L_qwait")
    g.lab("L_qready")
    A("s_add_u32 s33, s33, 1"); A("s_and_b32 s34, s33, 0xff")
    g.stamp(3)
    def qk(groups, nslots, limit):
        at = [12 * (i + 1) // (nslots + 1) for i in range(nslots)]
        for sr in range(12):
            s, r = divmod(sr, 4)
            for _ in range(at.count(sr)): slot(limit)
            for gg in groups:
                A(f"v_dot2c_f32_bf16 v{32+gg}, v{kreg(3*gg+s) + r}, v{20+4*s+r}")
    qk(range(4), 1, 24)
    if not dyn:
        while nxt[0] < 24 + D: slot()
        g.stamp(4)
        qk(range(4, 8), 1, 36)
    SR = list(range(32, 32 + NG))
    red8(SR)
    def round_pairs():
        for p in range(NG // 2): A(f"v_cvt_pk_bf16_f32 v{52+p}, v{32+2*p}, v{33+2*p}")
        for p in range(NG // 2):
            A(f"v_lshlrev_b32 v{32+2*p}, 16, v{52+p}"); A(f"v_and_b32 v{33+2*p}, 0xffff0000, v{52+p}")
    round_pairs()
    for r in SR: A(f"v_mul_f32 v{r}, s49, v{r}")
    round_pairs()
    slot()
    A("v_max3_f32 v52, v32, v33, v34")
    if dyn: A("v_max_f32 v52, v52, v35")
    else:
        A("v_max3_f32 v53, v35, v36, v37"); A("v_max3_f32 v52, v52, v38, v39"); A("v_max_f32 v52, v52, v53")
    red8groups(52, "v_max_f32")
    A("v_mul_f32 v52, s50, v52")
    A("s_nop 0")
    A("v_readlane_b32 s37, v52, 63")
    A("s_nop 1")
    A(f"v_mov_b32 v{vM}, s37")
    for r in SR: A(f"v_fma_f32 v{r}, v{r}, s50, -v{vM}")
    for r in SR: A(f"v_exp_f32 v{r}, v{r}")
    A(f"v_add_f32 v{vL}, v32, v33")
    for r in SR[2:]: A(f"v_add_f32 v{vL}, v{vL}, v{r}")
    for r in SR: A(f"v_cvt_pk_bf16_f32 v{r}, v{r}, v{r}")
    def ml_write(count):
        red8groups(vL, "v_add_f32")
        A("s_lshl_b32 s36, s32, 2")
        A("v_mov_b32 v52, s36")
        A("s_mov_b32 exec_lo, 0"); A("s_mov_b32 exec_hi, 0x80000000")
        A(f"ds_write2_b32 v52, v{vM}, v{vL} offset0:{LDS_ML//4} offset1:{LDS_ML//4+8}")
        if count: A(f"ds_add_u32 v{vZero}, v{vOne} offset:{LDS_FLAG+4}")
        A("s_mov_b64 exec, -1")
    if not dyn: ml_write(True)
    g.stamp(5)
    slot()
    A(f"v_mul_u32_u24 v{vWd}, 1280, v2")
    A(f"v_lshl_add_u32 v{vWd}, v3, 4, v{vWd}")
    A("v_and_b32 v53, 1, v2"); A("v_lshrrev_b32 v52, 1, v2"); A("v_lshl_add_u32 v52, v53, 4, v52")
    A("v_add_u32 v52, 2, v52")
    A(f"v_mul_u32_u24 v{vWoA}, 1280, v52")
    A(f"v_lshl_add_u32 v{vWoA}, v3, 4, v{vWoA}")
    A(f"v_add_u32 v{vWoB}, 10240, v{vWoA}")
    A("s_lshr_b32 s36, s32, 1"); A("s_mul_i32 s36, s36, 1280")
    A("s_and_b32 s37, s32, 1"); A("s_lshl_b32 s37, s37, 6"); A("s_add_u32 s36, s36, s37")
    A(f"v_mul_u32_u24 v{vOr}, {OSTR}, v2")
    A("v_lshrrev_b32 v52, 1, v3"); A(f"v_lshl_add_u32 v{vOr}, v52, 4, v{vOr}")
    A("v_and_b32 v53, 1, v3"); A("v_mul_u32_u24 v53, 320, v53"); A(f"v_add_u32 v{vOr}, v53, v{vOr}")
    A(f"v_add_u32 v{vOr}, s36, v{vOr}")
    A("v_lshrrev_b32 v52, 4, v1"); A("v_lshlrev_b32 v52, 5, v52"); A("v_lshl_add_u32 v52, v3, 2, v52")
    A("s_mul_i32 s36, s30, 6"); A("s_add_u32 s36, s36, s32"); A("s_lshl_b32 s36, s36, 10")
    A("s_lshl_b32 s37, s31, 7"); A("s_add_u32 s36, s36, s37"); A(f"s_add_u32 s36, s36, {OP_OFF}")
    A(f"v_add_u32 v{vOPst}, s36, v52")
    A("s_lshl_b32 s36, s52, 1"); A("s_add_u32 s36, s36, s32"); A("s_lshl_b32 s36, s36, 12")
    A("s_lshl_b32 s37, s51, 7"); A("s_add_u32 s36, s36, s37"); A(f"s_add_u32 s36, s36, {FP_OFF}")
    A(f"v_add_u32 v{vFP}, s36, v52")
    A("s_lshl_b32 s36, s53, 10"); A(f"s_add_u32 s36, s36, {OP_OFF}")
    if copoll:
        assert not dyn
        A(f"v_add_u32 v{vGat}, s36, v{vL16}")
        A(f"s_mul_i32 s36, s32, {OSTR}"); A(f"s_add_u32 s36, s36, {LDS_O + 1280}")
        A("v_lshrrev_b32 v52, 4, v1"); A("v_lshlrev_b32 v52, 2, v52"); A("v_lshl_add_u32 v52, v3, 4, v52")
        A(f"v_add_u32 v{vG}, s36, v52")
        A(f"v_lshl_add_u32 v{vCnt}, v2, 4, s36")
    else:
        A(f"v_lshl_add_u32 v{vGat}, v3, 7, s36")
        A(f"v_lshl_add_u32 v{vGat}, v2, 4, v{vGat}")
    A("s_mul_i32 s36, s53, 171"); A("s_lshr_b32 s36, s36, 10")
    A("s_lshl_b32 s36, s36, 10"); A(f"s_add_u32 s36, s36, {HDR_OFF}")
    A(f"v_lshl_add_u32 v{vGH}, v3, 7, s36")
    A("s_lshl_b32 s36, s32, 5")
    A(f"v_add_u32 v{vHid}, s36, v{vK4}")

    NV = 12 if dyn else 24
    def pv_step(idx, cls, st):
        gg, s = divmod(idx, 3)
        a = 12 + 4 * (gg & 1)
        pv_idx[0] = idx
        if s == 0:
            for r in range(4): A(f"v_and_b32 v{a+r}, v{32+gg}, v{4+r}")
        g.wait(("V", idx))
        issued = False
        if nxt[0] < NSEQ:
            if nxt[0] <= NV + idx + D:
                issue(nxt[0]); nxt[0] += 1; issued = True
        elif cls == "A" and st["w"] < NWL:
            w_load(st["w"]); st["w"] += 1; issued = True
        if s == 0 and not issued: A("s_nop 0")
        A(f"v_mfma_f32_16x16x32_bf16 {q4(40+4*s)}, {q4(a)}, {q4(vreg(idx))}, {q4(40+4*s)}")
    def owrite():
        for s in range(3): A(f"ds_write_b128 v{vOw}, {q4(40+4*s)} offset:{LDS_O + 1280*s}")

    if dyn:
        for idx in range(12): pv_step(idx, "C", None)
        while nxt[0] < NSEQ:
            issue(nxt[0]); nxt[0] += 1
        assert g.vm[-6:] == seq[-6:]
        g.stamp(6)
        if diag: A("s_mov_b32 s63, 0")
        def softmax_item(tag):
            A("v_add_f32 v37, v37, v38")
            A("v_add_f32 v37, v37, v39")
            red8([37])
            bf16r(37, 37)
            A("v_mul_f32 v37, s49, v37")
            bf16r(37, 37)
            A(f"v_fma_f32 v38, v37, s50, -v{vM}")
            A("v_cmp_lt_f32 vcc, 0, v38")
            A("s_cmp_eq_u64 vcc, 0")
            A(f"s_cbranch_scc1 L_nors{tag}")
            A("v_mov_b32 v52, v37")
            red8groups(52, "v_max_f32")
            A("v_mul_f32 v52, s50, v52")
            A("s_nop 0")
            A("v_readlane_b32 s36, v52, 63")
            A("s_nop 1")
            A(f"v_subrev_f32 v52, s36, v{vM}")
            A("v_exp_f32 v52, v52")
            A(f"v_mov_b32 v{vM}, s36")
            A(f"v_mul_f32 v{vL}, v{vL}, v52")
            for r in range(12): A(f"v_mul_f32 v{40+r}, v{40+r}, v52")
            A(f"v_fma_f32 v38, v37, s50, -v{vM}")
            g.lab(f"L_nors{tag}")
            A("v_exp_f32 v38, v38")
            A("s_nop 0")
            A(f"v_add_f32 v{vL}, v{vL}, v38")
            A("v_cvt_pk_bf16_f32 v38, v38, v38")
            for r in range(4): A(f"v_and_b32 v{12+r}, v38, v{4+r}")
        def pv_item(vb):
            for s in range(3): A(f"v_mfma_f32_16x16x32_bf16 {q4(40+4*s)}, v[12:15], {q4(vb+4*s)}, {q4(40+4*s)}")
        pars = ((VD, VD2), (VD2, VD)) if full else ((VD, VD),)
        for par, (vcur, vnxt) in enumerate(pars):
            g.lab(f"L_dyn{par}")
            for s in range(3): A(f"v_mov_b32 v{37+s}, 0")
            if full: A(f"s_mov_b32 s60, {par}")
            A("s_waitcnt vmcnt(3)")
            A(f"v_readfirstlane_b32 s36, v{vG}")
            for r in range(4):
                for s in range(3): A(f"v_dot2c_f32_bf16 v{37+s}, v{KD+4*s+r}, v{20+4*s+r}")
            A(f"s_cmp_ge_u32 s36, {NDYN}"); A("s_cbranch_scc1 L_dyn_last")
            grab()
            if layout == "inter": A(f"s_add_u32 s36, s36, {64 * (S + 1)}")
            else:
                A("s_lshr_b32 s37, s36, 6"); A("s_and_b32 s36, s36, 63"); A("s_lshl_b32 s36, s36, 3")
                A("s_add_u32 s36, s36, s37"); A(f"s_add_u32 s36, s36, {S + 1}")
            A("s_add_u32 s36, s36, s61"); A("s_and_b32 s36, s36, 511")
            A("s_mul_i32 s36, s36, 3072")
            A("v_add_u32 v9, s36, v10")
            for s in range(3): A(f"global_load_dwordx4 {q4(KD+4*s)}, v9, s[6:7] offset:{128*s} nt")
            if full:
                for s in range(3): A(f"global_load_dwordx4 {q4(vnxt+4*s)}, v9, s[8:9] offset:{128*s} nt")
            if diag: A("s_add_u32 s63, s63, 1")
            softmax_item(f"a{par}")
            A(f"s_waitcnt vmcnt({7 if full else 4})")
            A("s_nop 0")
            pv_item(vcur)
            if not full:
                for s in range(3): A(f"global_load_dwordx4 {q4(VD+4*s)}, v9, s[8:9] offset:{128*s} nt")
        A("s_branch L_dyn0")

        g.lab("L_dyn_last")
        g.vm = []
        A("s_mov_b32 s59, 0")
        if w0:
            A(f"s_cmp_lt_u32 s32, {w0}"); A("s_cbranch_scc1 L_noflag2")
            A(f"ds_write_b32 v{vZero}, v{vOne} offset:{LDS_FLAG+4}")
        if wentry and not wdyn_early:
            A("s_cmp_lt_u32 s2, 240"); A("s_cbranch_scc0 L_noflag2")
            for i in range(NWL): w_load(i)
            A("s_mov_b32 s59, 1")
        g.lab("L_noflag2")
        A("s_nop 1")
        softmax_item("b")
        ml_write(False)
        A("s_cmp_eq_u32 s59, 0"); A("s_cbranch_scc0 L_vw5")
        A("s_waitcnt vmcnt(0)")
        g.lab("L_vw5")
        if full: A("s_cmp_eq_u32 s60, 0")
        A(f"s_waitcnt vmcnt({NWL})")
        if full:
            A("s_cbranch_scc0 L_pvl1")
            pv_item(VD)
            A("s_branch L_pvl2")
            g.lab("L_pvl1")
            pv_item(VD2)
            g.lab("L_pvl2")
        else:
            pv_item(VD)
        g.stamp(7)
        A("s_cmp_eq_u32 s59, 0"); A("s_cbranch_scc0 L_now")
        if w0 or not wentry:
            A("s_cmp_lt_u32 s2, 240"); A("s_cbranch_scc0 L_now")
            if wdyn_early: A(f"s_cmp_lt_u32 s32, {w0}"); A("s_cbranch_scc0 L_now")
            if w0: lds_wait("xwait", LDS_FLAG + 4, "v_cmp_eq_u32 vcc, 0, v54", 4)
            g.vm = []
            for i in range(NWL): w_load(i)
        g.lab("L_now")
        A("s_nop 3")
        owrite()
    else:
        idx = 0
        while nxt[0] < NSEQ:
            pv_step(idx, "C", None); idx += 1
        g.stamp(6)
        A("s_cmp_lt_u32 s2, 240"); A("s_cbranch_scc1 L_pvA")
        vm_save = list(g.vm)
        for i in range(idx, 24): pv_step(i, "B", None)
        A("s_branch L_pvdone")
        g.lab("L_pvA")
        g.vm = vm_save
        st = dict(w=0)
        if wall:
            for i in range(2): w_load(i); st["w"] += 1
        for i in range(idx, 24): pv_step(i, "A", st)
        while st["w"] < NWL:
            w_load(st["w"]); st["w"] += 1
        g.lab("L_pvdone")
        g.stamp(7)
        A("s_nop 5")
        owrite()

    def quad_reduce(scale):
        if scale and dyn:
            A(f"ds_read_b128 v[32:35], v{vZero} offset:{LDS_ML}")
            A(f"ds_read_b128 v[36:39], v{vZero} offset:{LDS_ML+16}")
            A(f"ds_read_b32 v50, v{vK4} offset:{LDS_ML}")
        A(f"ds_read_b128 v[40:43], v{vOr} offset:{LDS_O}")
        A(f"ds_read_b128 v[44:47], v{vOr} offset:{LDS_O + 768}")
        if scale and dyn:
            A(f"s_waitcnt lgkmcnt({0 if diag else 2})")
            A("v_max3_f32 v32, v32, v33, v34"); A("v_max3_f32 v35, v35, v36, v37")
            A("v_max3_f32 v32, v32, v38, v39"); A("v_max_f32 v32, v32, v35")
            A("v_sub_f32 v50, v50, v32")
            A("v_exp_f32 v50, v50")
        elif scale:
            A(f"ds_read_b32 v50, v{vK4} offset:{LDS_F}")
        A("s_waitcnt lgkmcnt(0)")
        for r in range(4): A(f"v_add_f32 v{40+r}, v{40+r}, v{44+r}")
        if scale:
            for r in range(4): A(f"v_mul_f32 v{40+r}, v{40+r}, v50")
        rows_reduce(40)
        A("s_mov_b32 s36, 0x00ff00ff")
        A("s_mov_b32 s37, 0x00ff00ff")
        A(f"v_add_f32_dpp v40, v40, v40 row_ror:8 {DPP}")
        A("v_bfi_b32 v40, v8, s34, v40")
        A("s_mov_b64 exec, s[36:37]")
    uq = uq and not dyn
    if uq: A("s_mov_b32 s59, 0")
    A("s_cmp_lt_u32 s32, 6")
    A("s_waitcnt lgkmcnt(0)")
    A("s_barrier")
    A("s_cbranch_scc0 L_nopub")
    if uq: g.lab("L_qr")
    quad_reduce(True)
    if uq: A("s_cmp_eq_u32 s59, 0")
    A(f"global_store_dword v{vOPst}, v40, s[28:29] {sf}")
    if uq: A("s_cbranch_scc0 L_fdone")
    A("s_mov_b64 exec, -1")
    if dyn:
        A("s_branch L_pubdone")
        g.lab("L_nopub")
        A("s_cmp_eq_u32 s32, 6"); A("s_cbranch_scc0 L_pubdone")
        A("v_lshlrev_b32 v52, 2, v3")
        A(f"ds_read2_b32 v[42:43], v52 offset0:{LDS_ML//4} offset1:{LDS_ML//4+8}")
        A("s_lshl_b32 s36, s2, 7"); A(f"s_add_u32 s36, s36, {HDR_OFF}")
        A("v_mov_b32 v52, s36")
        A("s_waitcnt lgkmcnt(0)")
        A(f"v_max_f32_dpp v40, v42, v42 quad_perm:[1,0,3,2] {DPP}")
        A("s_nop 1")
        A(f"v_max_f32_dpp v40, v40, v40 quad_perm:[2,3,0,1] {DPP}")
        A("s_nop 1")
        A(f"v_max_f32_dpp v40, v40, v40 row_half_mirror {DPP}")
        A("v_sub_f32 v42, v42, v40")
        A("v_exp_f32 v42, v42")
        A("s_nop 0")
        A("v_mul_f32 v41, v42, v43")
        A("v_mov_b32 v42, s33"); A("v_mov_b32 v43, s33")
        for k, mode in enumerate(("quad_perm:[1,0,3,2]", "quad_perm:[2,3,0,1]", "row_half_mirror")):
            if k: A("s_nop 1")
            A(f"v_add_f32_dpp v41, v41, v41 {mode} {DPP}")
        A("s_mov_b64 exec, 1")
        A("global_store_dwordx4 v52, v[40:43], s[28:29] sc1")
        A("s_mov_b64 exec, -1")
        g.lab("L_pubdone")
    else:
        g.lab("L_nopub")
    g.stamp(8)
    A("s_cmp_lt_u32 s2, 240")
    A("s_barrier")
    A("s_cbranch_scc0 L_tailB")

    def ogather():
        A(f"global_load_dwordx4 v[32:35], v{vGat}, s[28:29] {pf}")
        if dyn: A(f"global_load_dwordx4 v[36:39], v{vGH}, s[28:29] sc1")
    ogather(); g.vm += ["og"] * (2 if dyn else 1)
    A(f"ds_read_b32 v{vHid}, v{vHid} offset:{LDS_HID}")
    A(f"ds_read_b64 v[{vG2}:{vG2+1}], v{vZero} offset:{LDS_G}")
    A("s_waitcnt lgkmcnt(0)")
    for r in range(4): A(f"v_and_b32 v{12+r}, v{vHid}, v{4+r}")
    g.wait(("W", 0))
    A("s_nop 0")
    A(f"v_mfma_f32_16x16x32_bf16 v[44:47], v[12:15], {q4(WB)}, 0")
    A("s_nop 7")
    for r in range(4): A(f"v_mul_f32 v{56+r}, v{vG2+1}, v{44+r}")
    if uq:
        A("s_mov_b32 s59, 1")
        A(f"v_mov_b32 v{vOPst}, v{vFP}")
        A(f"v_mov_b32 v{vK4}, 32")
    A("s_waitcnt vmcnt(0)")
    g.lab("L_o_chk")
    tagcheck([32, 33, 34, 35], 52, fulltags=(38, 39) if dyn else ())
    retry("o", ogather)
    g.stamp(9)
    if dyn:
        A(f"v_max_f32_dpp v38, v36, v36 quad_perm:[1,0,3,2] {DPP}")
        A("s_nop 1")
        A(f"v_max_f32_dpp v38, v38, v38 quad_perm:[2,3,0,1] {DPP}")
        A("s_nop 1")
        A(f"v_max_f32_dpp v38, v38, v38 row_half_mirror {DPP}")
        A("v_sub_f32 v36, v36, v38")
        A("v_exp_f32 v36, v36")
        A("s_nop 0")
        for r in (37, 32, 33, 34, 35): A(f"v_mul_f32 v{r}, v{r}, v36")
        red8([37, 32, 33, 34, 35])
        A("v_rcp_f32 v37, v37")
        A("s_nop 0")
        for t in range(4): A(f"v_mul_f32 v{32+t}, v{32+t}, v37")
    elif copoll:
        rows_reduce(32, lead_nop=False)
        A("s_nop 1")
        A(f"v_add_f32_dpp v32, v32, v32 row_ror:8 {DPP}")
        A("v_cvt_pk_bf16_f32 v32, v32, v32")
        A(f"ds_write_b32 v{vG}, v32")
        A(f"ds_read_b128 v[32:35], v{vCnt}")
        A("s_waitcnt lgkmcnt(0)")
    else:
        red8([32, 33, 34, 35])
    if not copoll:
        for t in range(4): A(f"v_cvt_pk_bf16_f32 v{32+t}, v{32+t}, v{32+t}")
    areg = [12, 16, 36, 48]
    for t in range(4):
        for r in range(4): A(f"v_and_b32 v{areg[t]+r}, v{32+t}, v{4+r}")
        if t >= 1:
            A(f"v_mfma_f32_16x16x32_bf16 v[44:47], {q4(areg[t-1])}, {q4(WB+4*t)}, {'0' if t == 1 else 'v[44:47]'}")
    A("s_nop 0")
    A(f"v_mfma_f32_16x16x32_bf16 v[44:47], {q4(areg[3])}, {q4(WB+16)}, v[44:47]")
    A("s_nop 7")
    for r in range(4): A(f"v_fma_f32 v{44+r}, v{44+r}, v{vG2}, v{56+r}")
    A(f"ds_write_b128 v{vOw}, v[44:47] offset:{LDS_O}")
    A("s_cmp_lt_u32 s32, 2")
    A("s_waitcnt lgkmcnt(0)")
    A("s_barrier")
    if uq:
        A("s_cbranch_scc1 L_qr")
        A("s_branch L_exitS")
        g.lab("L_fdone")
    else:
        A("s_cbranch_scc0 L_exitS")
        quad_reduce(False)
        A(f"global_store_dword v{vFP}, v40, s[28:29] {sf}")
    g.stamp(10)
    A("s_branch L_exitS")

    g.lab("L_tailB")
    if diag: A("s_barrier")
    A("s_sub_u32 s36, s2, 240"); A("s_lshl_b32 s37, s32, 4"); A("s_add_u32 s38, s36, s37")
    A("s_cmp_lt_u32 s38, 20"); A("s_cbranch_scc0 L_exitS")
    A("s_lshl_b32 s36, s38, 12"); A(f"s_add_u32 s36, s36, {FP_OFF}")
    A(f"v_add_u32 v{vGat}, s36, v{vL16}")
    A("v_and_b32 v52, 1, v3"); A("v_lshlrev_b32 v52, 4, v52")
    A("v_lshrrev_b32 v53, 4, v1"); A("v_lshl_add_u32 v52, v53, 2, v52")
    A("v_lshrrev_b32 v53, 1, v3")
    A("s_lshl_b32 s36, s38, 5")
    A(f"v_add3_u32 v{vFP}, v52, v53, s36")
    A(f"v_lshlrev_b32 v{vFP}, 1, v{vFP}")
    if outwarm: A(f"global_load_ushort v48, v{vFP}, s[24:25]")
    def fgather():
        for k in range(3): A(f"global_load_dwordx4 {q4(32+4*k)}, v{vGat}, s[28:29] offset:{1024*k} {pf}")
    g.stamp(9)
    fgather()
    A("s_waitcnt vmcnt(0)")
    g.lab("L_f_chk")
    tagcheck(range(32, 44), 52)
    retry("f", fgather)
    g.stamp(10)
    for r in range(4): A(f"v_add_f32 v{32+r}, v{32+r}, v{36+r}")
    for r in range(4): A(f"v_add_f32 v{32+r}, v{32+r}, v{40+r}")
    rows_reduce(32)
    A("s_mov_b32 s36, 0x00ff00ff"); A("s_mov_b32 s37, 0x00ff00ff")
    A(f"v_add_f32_dpp v32, v32, v32 row_ror:8 {DPP}")
    A("v_cvt_pk_bf16_f32 v32, v32, v32")
    A("s_mov_b64 exec, s[36:37]")
    A(f"global_store_short v{vFP}, v32, s[24:25] {of}")
    A("s_cmp_lg_u32 s38, 0"); A("s_cbranch_scc1 L_exitS")
    A("s_mov_b64 exec, 1")
    A("v_mov_b32 v53, s33")
    A(f"global_store_dword v{vZero}, v53, s[28:29] {of}")
    if leak:
        i, j, mult = leak
        g.stamp(11)
        A("s_waitcnt lgkmcnt(0)")
        A(f"s_sub_u32 s36, s{64+2*j}, s{64+2*i}")
        A(f"s_mul_i32 s36, s36, {mult}")
        A("s_min_u32 s36, s36, 100000")
        g.lab("L_leak")
        A("s_memrealtime s[54:55]")
        A("s_waitcnt lgkmcnt(0)")
        A("s_sub_u32 s37, s54, s86")
        A("s_cmp_lt_u32 s37, s36")
        A("s_cbranch_scc1 L_leak")
    g.lab("L_exitS")
    if diag: A("s_add_u32 s32, s32, 4"); A("s_branch L_exit")
    else: A("s_endpgm")

    g.lab("L_service")
    g.vm = list(svc_vm)
    common_consts()
    A("s_mul_i32 s36, s30, 10240"); A(f"s_add_u32 s36, s36, {QP_OFF}")
    A("s_add_u32 s44, s28, s36"); A("s_addc_u32 s45, s29, 0")
    A("s_mul_i32 s36, s51, 86"); A("s_lshr_b32 s36, s36, 8")
    A("s_mul_i32 s37, s36, 3"); A("s_sub_u32 s58, s51, s37")
    A("s_mul_i32 s36, s36, 40960"); A(f"s_add_u32 s36, s36, {QP_OFF + 6144}")
    A("s_lshr_b32 s37, s58, 1"); A("s_mul_i32 s37, s37, 10240"); A("s_add_u32 s36, s36, s37")
    A("s_and_b32 s58, s58, 1"); A("s_lshl_b32 s37, s58, 11"); A("s_add_u32 s36, s36, s37")
    A("s_add_u32 s54, s28, s36"); A("s_addc_u32 s55, s29, 0")
    A("s_add_u32 s56, s54, 20480"); A("s_addc_u32 s57, s55, 0")
    A("s_lshl_b32 s36, s30, 10"); A(f"s_add_u32 s36, s36, {HDR_OFF}")
    A("s_add_u32 s42, s28, s36"); A("s_addc_u32 s43, s29, 0")
    A("s_mov_b32 s47, 0x01000100"); A("s_mov_b32 s48, 0x03020302")
    A("s_lshl_b32 s36, s32, 11")
    A("s_lshl_b32 s37, s31, 8"); A("s_add_u32 s36, s36, s37")
    A("v_lshrrev_b32 v53, 4, v1")
    A("v_lshlrev_b32 v53, 6, v53")
    A("v_lshl_add_u32 v54, v3, 3, v53")
    A("v_add_u32 v54, s36, v54")
    def pstep(t, preg, xreg, sel, first):
        a = 12 + 4 * (t & 1)
        A(f"v_perm_b32 v52, v{xreg}, v{xreg}, s{sel}")
        for r in range(4): A(f"v_and_b32 v{a+r}, v52, v{4+r}")
        A("s_nop 1")
        A(f"v_mfma_f32_16x16x32_bf16 v[40:43], {q4(a)}, {q4(preg)}, {'0' if first else 'v[40:43]'}")
    def ppublish(off):
        A("s_nop 7")
        A("v_permlane32_swap_b32 v40, v42")
        A("v_permlane32_swap_b32 v41, v43")
        A("s_nop 1")
        A(f"v_add_f32_dpp v44, v42, v40 row_ror:8 {DPP}")
        A(f"v_add_f32_dpp v45, v43, v41 row_ror:8 {DPP}")
        A("v_bfi_b32 v44, v8, s34, v44")
        A("v_bfi_b32 v45, v8, s34, v45")
        A("s_mov_b32 exec_lo, 0x00ff00ff"); A("s_mov_b32 exec_hi, 0x00ff00ff")
        A(f"global_store_dwordx2 v54, v[44:45], s[44:45] offset:{off} sc1")
        A("s_mov_b64 exec, -1")
    for t in range(10):
        g.wait(("P", t))
        pstep(t, PB + 4 * t, 20 + t // 2, 47 + (t & 1), t == 0)
    A("s_waitcnt lgkmcnt(0)")
    A("s_add_u32 s33, s33, 1"); A("s_and_b32 s34, s33, 0xff")
    ppublish(0)
    g.stamp(1)
    GR = 128
    vA, vB = 30, 31
    A("s_cmp_eq_u32 s32, 1"); A("s_cbranch_scc1 L_jobH")
    A("s_cmp_eq_u32 s32, 2"); A("s_cbranch_scc1 L_jobG")
    A("s_cmp_eq_u32 s32, 3"); A("s_cbranch_scc1 L_jobF")
    A("v_min_u32 v54, 47, v1")
    A("v_lshrrev_b32 v53, 4, v54")
    A("v_and_b32 v52, 15, v54")
    A("v_lshlrev_b32 v52, 4, v52")
    A(f"v_lshl_add_u32 v{vA}, v53, 11, v52")
    A("v_lshlrev_b32 v55, 7, v53")
    A("v_and_b32 v56, 3, v54"); A("v_lshl_add_u32 v55, v56, 5, v55")
    A("v_bfe_u32 v56, v54, 2, 1"); A("v_lshl_add_u32 v55, v56, 3, v55")
    A("v_bfe_u32 v56, v54, 3, 1"); A("v_lshl_add_u32 v55, v56, 2, v55")
    def qgather():
        for p in range(8): A(f"global_load_dwordx4 {q4(GR+4*p)}, v{vA}, s[44:45] offset:{p*256} sc1")
    A("s_waitcnt vmcnt(0)")
    qgather()
    A("s_waitcnt vmcnt(0)")
    g.lab("L_q_chk")
    tagcheck(range(GR, GR + 32), 52)
    retry("q", qgather, sleep=psleep)
    for st in (16, 8, 4):
        for r in range(st): A(f"v_add_f32 v{GR+r}, v{GR+r}, v{GR+st+r}")
    A(f"v_cvt_pk_bf16_f32 v52, v{GR}, v{GR+1}")
    A(f"v_cvt_pk_bf16_f32 v53, v{GR+2}, v{GR+3}")
    A(f"ds_write2_b32 v55, v52, v53 offset0:{LDS_Q//4} offset1:{LDS_Q//4+4}")
    A(f"ds_write_b32 v{vZero}, v{vOne} offset:{LDS_FLAG}")
    g.stamp(2)
    A("s_branch L_svc_done")
    g.lab("L_jobH")
    A("s_mul_i32 s36, s58, 10240")
    A(f"v_add_u32 v{vB}, s36, v{vL16}")
    A("s_cmp_eq_u32 s58, 0"); A("s_cselect_b32 s59, 0, 1.0")
    A("v_and_b32 v52, 15, v1"); A("v_lshrrev_b32 v53, 4, v1"); A("v_lshl_add_u32 v52, v52, 2, v53")
    A("v_bfe_u32 v53, v52, 1, 3"); A(f"v_lshlrev_b32 v{vA}, 5, v53")
    A("v_bfe_u32 v53, v52, 4, 1"); A(f"v_lshl_add_u32 v{vA}, v53, 4, v{vA}")
    A("v_bfe_u32 v53, v52, 5, 1"); A(f"v_lshl_add_u32 v{vA}, v53, 3, v{vA}")
    A("v_and_b32 v53, 1, v52"); A(f"v_lshl_add_u32 v{vA}, v53, 2, v{vA}")
    lds_wait("hwait", LDS_FLAG, "v_cmp_eq_u32 vcc, 0, v54", 16)
    def hgather():
        for m, sb in enumerate(("s[54:55]", "s[56:57]")):
            for a, va in enumerate((vL16, vB)):
                for k in range(2):
                    A(f"global_load_dwordx4 {q4(GR + 16*m + 8*a + 4*k)}, v{va}, {sb} offset:{1024*k} sc1")
    hgather()
    A("s_waitcnt vmcnt(0)")
    g.lab("L_h_chk")
    tagcheck(range(GR, GR + 32), 52)
    retry("h", hgather, sleep=4 * psleep)
    for m in range(2):
        b = GR + 16 * m
        for r in range(4): A(f"v_add_f32 v{b+r}, v{b+r}, v{b+4+r}")
        for r in range(4): A(f"v_add_f32 v{b+8+r}, v{b+8+r}, v{b+12+r}")
        for r in range(4): A(f"v_fma_f32 v{b+r}, v{b+8+r}, s59, v{b+r}")
    for m in range(2): rows_reduce(GR + 16 * m)
    bf16r(52, GR); bf16r(53, GR + 16)
    A("v_mul_f32 v54, v52, v52")
    A(f"v_mov_b32 v55, {f2u(0.044715):#x}")
    A("v_fma_f32 v54, v54, v55, 1.0")
    A("v_mul_f32 v54, v54, v52")
    A(f"v_mul_f32 v54, {f2u(-2 * 0.7978845608028654 * LOG2E):#x}, v54")
    A("v_exp_f32 v54, v54")
    A("s_nop 0")
    A("v_add_f32 v54, 1.0, v54")
    A("v_rcp_f32 v54, v54")
    A("s_nop 0")
    A("v_mul_f32 v54, v54, v52")
    bf16r(54, 54)
    A("v_mul_f32 v54, v54, v53")
    A("v_cvt_pk_bf16_f32 v54, v54, v54")
    A(f"ds_write_b32 v{vA}, v54 offset:{LDS_HID}")
    g.stamp(2)
    A("s_branch L_svc_done")
    g.lab("L_jobG")
    A("v_mul_u32_u24 v53, 20, v1")
    A(f"global_load_dwordx4 {q4(GR)}, v53, s[4:5]" + SNT)
    A(f"global_load_dword v{GR+4}, v53, s[4:5] offset:16" + SNT)
    A(f"global_load_dwordx4 {q4(GR+6)}, v53, s[22:23]" + SNT)
    A(f"global_load_dword v{GR+10}, v53, s[22:23] offset:16" + SNT)
    if prefetch_code:
        A("s_getpc_b64 s[36:37]")
        g.lab("L_pc")
        A(f"s_sub_u32 s36, s36, L_pc-{KN}"); A("s_subb_u32 s37, s37, 0")
        A("v_lshlrev_b32 v53, 7, v1")
        A("v_add_u32 v53, 1024, v53")
        A(f"v_min_u32 v53, L_end-{KN}, v53")
        A("global_load_dword v31, v53, s[36:37]")
    A("v_mov_b32 v56, 0")
    A("s_waitcnt vmcnt(0)")
    for i in range(5):
        xr = GR + i; wr = GR + 6 + i
        A(f"v_lshlrev_b32 v52, 16, v{xr}"); A(f"v_and_b32 v53, 0xffff0000, v{xr}")
        A(f"v_lshlrev_b32 v54, 16, v{wr}"); A(f"v_and_b32 v55, 0xffff0000, v{wr}")
        A("v_mul_f32 v52, v52, v54"); A("v_mul_f32 v53, v53, v55")
        A("v_cvt_pk_bf16_f32 v52, v52, v53")
        A("v_lshlrev_b32 v53, 16, v52"); A("v_and_b32 v52, 0xffff0000, v52")
        A("v_add_f32 v56, v56, v53"); A("v_add_f32 v56, v56, v52")
    red64(56, "v_add_f32")
    A("s_nop 0")
    A("v_readlane_b32 s36, v56, 63")
    A("s_nop 1")
    A("v_mov_b32 v56, s36")
    bf16r(56, 56)
    A(f"v_mul_f32 v56, {f2u(-LOG2E):#x}, v56")
    A("v_exp_f32 v56, v56")
    A("s_nop 0")
    A("v_add_f32 v56, 1.0, v56")
    A("v_rcp_f32 v56, v56")
    A("s_nop 0")
    bf16r(56, 56)
    A("v_sub_f32 v57, 1.0, v56")
    bf16r(57, 57)
    A(f"ds_write_b64 v{vZero}, v[56:57] offset:{LDS_G}")
    A("v_mov_b32 v52, 1.0")
    A(f"ds_write_b32 v{vZero}, v52 offset:{LDS_F + 32}")
    g.stamp(2)
    A("s_branch L_svc_done")
    g.lab("L_jobF")
    A("s_cmp_eq_u32 s39, 0"); A("s_cselect_b32 s47, s47, s48")
    A("s_waitcnt vmcnt(1)")
    for t in range(5): pstep(t, PB + 40 + 4 * t, 20 + t, 47, t == 0)
    ppublish(2048)
    g.stamp(3)
    if not dyn:
        A("v_lshlrev_b32 v55, 2, v3")
        lds_wait("fwait", LDS_FLAG + 4, "v_cmp_ne_u32 vcc, 8, v54", 8)
        A(f"ds_read2_b32 v[56:57], v55 offset0:{LDS_ML//4} offset1:{LDS_ML//4+8}")
        A("v_mov_b32 v58, s33"); A("v_mov_b32 v59, s33")
        A("s_lshl_b32 s36, s31, 7")
        A(f"v_add_u32 v52, s36, v{vL16}")
        A("s_waitcnt lgkmcnt(0)")
        A("s_mov_b64 exec, 0xff")
        A("global_store_dwordx4 v52, v[56:59], s[42:43] sc1")
        A("s_mov_b64 exec, -1")
        g.stamp(3)
        def hdrgather(): A(f"global_load_dwordx4 {q4(GR)}, v{vL16}, s[42:43] sc1")
        A("s_waitcnt vmcnt(0)")
        hdrgather()
        A("s_waitcnt vmcnt(0)")
        g.lab("L_hd_chk")
        A(f"v_xor_b32 v52, s33, v{GR+2}"); A(f"v_xor_b32 v53, s33, v{GR+3}")
        A("v_or_b32 v52, v52, v53")
        A("v_cmp_ne_u32 vcc, 0, v52")
        retry("hd", hdrgather, sleep=psleep)
        A(f"v_mov_b32 v52, v{GR}")
        red64(52, "v_max_f32")
        A("s_nop 0")
        A("v_readlane_b32 s36, v52, 63")
        A("s_nop 1")
        A(f"v_subrev_f32 v52, s36, v{GR}")
        A("v_exp_f32 v52, v52")
        A("s_nop 0")
        A(f"v_mul_f32 v53, v52, v{GR+1}")
        red64(53, "v_add_f32")
        A("v_rcp_f32 v53, v53")
        A("s_nop 0")
        A("v_readlane_b32 s36, v53, 63")
        A("v_cmp_eq_u32 vcc, s31, v2")
        A("s_nop 0")
        A("v_mul_f32 v52, s36, v52")
        A("s_mov_b64 exec, vcc")
        A(f"ds_write_b32 v55, v52 offset:{LDS_F}")
        A("s_mov_b64 exec, -1")
    g.stamp(2)

    g.lab("L_svc_done")
    A("s_waitcnt lgkmcnt(0)")
    A("s_barrier")
    KB = 64
    if diag: A("s_barrier"); A("s_barrier"); A("s_mov_b32 s63, 0")
    g.lab("L_exit")
    if diag and not leak:
        g.stamp(11)
        g.lab("L_dwait")
        A("s_sleep 32")
        A("s_memrealtime s[54:55]")
        A("s_waitcnt lgkmcnt(0)")
        A("s_sub_u32 s37, s54, s64")
        A("s_cmp_lt_u32 s37, 3500")
        A("s_cbranch_scc1 L_dwait")
        A("s_mov_b64 exec, 1")
        A("s_mul_i32 s36, s2, 12"); A("s_add_u32 s36, s36, s32"); A("s_lshl_b32 s36, s36, 7")
        A(f"s_add_u32 s36, s36, {STAMP_OFF}")
        if wsbase: A(f"s_sub_u32 s28, s28, {wsbase}"); A("s_subb_u32 s29, s29, 0")
        A("v_mov_b32 v52, s36")
        A("s_getreg_b32 s37, hwreg(HW_REG_XCC_ID)")
        A("s_waitcnt lgkmcnt(0)")
        A("s_mov_b32 s88, s46"); A("s_mov_b32 s89, s37"); A("s_mov_b32 s90, s63")
        for k in range(8):
            for r in range(4): A(f"v_mov_b32 v{KB+4*k+r}, s{64+4*k+r}")
            A(f"global_store_dwordx4 v52, {q4(KB+4*k)}, s[28:29] offset:{16*k}")
    g.lab("L_end")
    A("s_endpgm")
    L.append('.section .rodata,"a"'); L.append(".p2align 6"); L.append(f".amdhsa_kernel {KN}")
    L.append("  .amdhsa_next_free_vgpr 168")
    L.append("  .amdhsa_next_free_sgpr 96")
    L.append("  .amdhsa_accum_offset 168")
    L.append("  .amdhsa_group_segment_fixed_size 0"); L.append("  .amdhsa_kernarg_size 104")
    L.append("  .amdhsa_user_sgpr_count 2"); L.append("  .amdhsa_user_sgpr_kernarg_segment_ptr 1")
    L.append("  .amdhsa_system_sgpr_workgroup_id_x 1")
    L.append("  .amdhsa_float_denorm_mode_32 3")
    L.append(".end_amdhsa_kernel")
    return "\n".join(L) + "\n"

if __name__ == "__main__":
    import argparse, hazard, ast
    ap = argparse.ArgumentParser()
    ap.add_argument("-o", default="gated_mix__sliding_block_cached__geglu_ffn__decode.s")
    ap.add_argument("kv", nargs="*")
    a = ap.parse_args()
    kw = {}
    for x in a.kv:
        k, v = x.split("="); kw[k] = ast.literal_eval(v)
    t = gen(**kw)
    open(a.o, "w").write(t)
    pr = hazard.check(t)
    for x in pr: print(x)
    print(len(pr), "hazard findings")
```
